```python
import torch

def _softmax(x, axis=-1):
    return torch.softmax(x, dim=axis)
def _gelu(x):
    return torch.nn.functional.gelu(x, approximate="tanh")
def _silu(x):
    return torch.nn.functional.silu(x)
def _sigmoid(x):
    return torch.sigmoid(x)
def _layernorm(x, axis=-1, eps=1e-5):
    m = x.mean(dim=axis, keepdim=True)
    v = x.var(dim=axis, keepdim=True, unbiased=False)
    return (x - m) / torch.sqrt(v + eps)
def _scatter_add(tgt, idx, src, axis=0):
    return tgt.clone().index_add_(axis, idx, src)
def _segment_sum(src, seg, n):
    out = torch.zeros((n,) + src.shape[1:], dtype=src.dtype)
    return out.index_add_(0, seg, src)
def _pad(x, pw):
    flat = tuple(v for pair in reversed(pw) for v in pair)
    return torch.nn.functional.pad(x, flat)

kernel_name = 'recurrent_scan__grouped_kv_mqa__dense_activation_relu__prompt'

def setup_inputs():

    _w = (lambda a: (lambda t: t.to(torch.bfloat16) if t.is_floating_point() else t)(torch.as_tensor(a)))
    def _A_setup():
        B, S, D, H = 1, 2048, 640, 32
        Dh = D // H
        return {
            "x": _w((lambda *s: torch.randn(*s, dtype=torch.bfloat16) * 0.05)(B, S, D)),
            "wq": _w((lambda *s: torch.randn(*s, dtype=torch.bfloat16) * 0.05)(D, H * Dh)),
            "wk": _w((lambda *s: torch.randn(*s, dtype=torch.bfloat16) * 0.05)(D, Dh)),
            "wv": _w((lambda *s: torch.randn(*s, dtype=torch.bfloat16) * 0.05)(D, Dh)),
            "wo": _w((lambda *s: torch.randn(*s, dtype=torch.bfloat16) * 0.05)(H * Dh, D)),
        }
    _A_in = _A_setup()

    def _B_setup():
        B, S, D, Dff = 1, 2048, 640, 1728
        return {
            "x": _w((lambda *s: torch.randn(*s, dtype=torch.bfloat16) * 0.05)(B, S, D)),
            "w1": _w((lambda *s: torch.randn(*s, dtype=torch.bfloat16) * 0.05)(D, Dff)),
            "w2": _w((lambda *s: torch.randn(*s, dtype=torch.bfloat16) * 0.05)(Dff, D)),
        }
    _B_in = _B_setup()

    return {
        "A_x": _A_in["x"],
        "A_wq": _A_in["wq"],
        "A_wk": _A_in["wk"],
        "A_wv": _A_in["wv"],
        "A_wo": _A_in["wo"],
        "B_x": _B_in["x"],
        "B_w1": _B_in["w1"],
        "B_w2": _B_in["w2"],
    }

def reference(A_x, A_wq, A_wk, A_wv, A_wo, B_x, B_w1, B_w2):
    def _A_ref(x, wq, wk, wv, wo):
        B, S, D = x.shape
        H = 32
        Dh = D // H
        q = (lambda x, *d: x.permute(*d))((x @ wq).reshape(B, S, H, Dh), 0, 2, 1, 3)
        k = x @ wk
        v = x @ wv
        scores = torch.einsum("bhqd,bkd->bhqk", q, k) * (Dh ** -0.5)
        p = _softmax(scores, axis=-1)
        o = torch.einsum("bhqk,bkd->bhqd", p, v)
        return (lambda x, *d: x.permute(*d))(o, 0, 2, 1, 3).reshape(B, S, H * Dh) @ wo

    def _B_ref(x, w1, w2):
        h = torch.einsum("bsd,df->bsf", x, w1)
        zero = torch.zeros_like(h)
        h = torch.maximum(h, zero)
        return torch.einsum("bsf,fd->bsd", h, w2)

    x = A_x
    xn = _layernorm(x, axis=-1)
    s = _A_ref(xn, A_wq, A_wk, A_wv, A_wo)
    g = _silu(_B_ref(xn, B_w1, B_w2))
    return x + s * g
```

```python
class Asm:
    def __init__(self):
        self.L = []
    def __call__(self, s):
        for line in s.strip("\n").split("\n"):
            line = line.strip()
            if not line:
                continue
            if line.endswith(":") or line.startswith("."):
                self.L.append(line)
            else:
                self.L.append("    " + line)
    def label(self, l):
        self.L.append(l + ":")
    def comment(self, c):
        self.L.append("    ; " + c)
    def nop(self, n):
        while n > 0:
            k = min(n, 16)
            self.L.append(f"    s_nop {k-1}")
            n -= k
    def text(self):
        return "\n".join(self.L) + "\n"

def vr(base, n=1):
    return f"v{base}" if n == 1 else f"v[{base}:{base+n-1}]"
def ar(base, n=1):
    return f"a{base}" if n == 1 else f"a[{base}:{base+n-1}]"
def sr(base, n=1):
    return f"s{base}" if n == 1 else f"s[{base}:{base+n-1}]"

def kernel_header(a, name):
    a(".text")
    a(f".globl {name}")
    a(".p2align 8")
    a(f".type {name},@function")
    a.label(name)

def kernel_desc(name, nvgpr, nagpr=0, nsgpr=96):
    accum = (nvgpr + 3) // 4 * 4
    total = accum + nagpr if nagpr else nvgpr
    return f""".amdhsa_kernel {name}
  .amdhsa_next_free_vgpr {total}
  .amdhsa_next_free_sgpr {nsgpr}
  .amdhsa_accum_offset {accum}
  .amdhsa_group_segment_fixed_size 0
  .amdhsa_kernarg_size 88
  .amdhsa_user_sgpr_count 2
  .amdhsa_user_sgpr_kernarg_segment_ptr 1
  .amdhsa_system_sgpr_workgroup_id_x 1
  .amdhsa_float_denorm_mode_32 3
.end_amdhsa_kernel
"""

def srd(a, s, lo, hi, size):
    a(f"s_mov_b32 s{s}, s{lo}")
    a(f"s_and_b32 s{s+1}, s{hi}, 0xffff")
    a(f"s_mov_b32 s{s+2}, {size}")
    a(f"s_mov_b32 s{s+3}, 0x00020000")

QF_OFF = 0x0
KV_OFF = 0x280000
KV_TILE = 3584
ST_OFF = 0x2B8000
HF_OFF = 0x2C0000
OF_OFF = 0x980000
WS_SIZE = 0xC00000
OOB = 0x7FFF0000
```

```python
from asmlib import *
import struct
def f2h(x): return hex(struct.unpack('<I', struct.pack('<f', x))[0])

NAME = "k1_proj_kernel"
LDS = 163840
X_BYTES = 81920
RING = 20480
QSCALE = 0.22360679774997896 * 1.4426950408889634

S_XSRD = 4; S_WSRD = 8; S_OSRD = 12
S_RB = 16; S_CB = 17; S_W = 18; S_SLOT = 19; S_STEP = 20; S_SOFF = 21; S_RING = 22
S_T0 = 24
S_ONES = 40; S_LO1 = 41; S_HI1 = 42
S_KARG = 44
P_X, P_WQ, P_WK, P_WV, P_WO, P_BX, P_W1, P_W2, P_OUT, P_DBG, P_WS = [S_KARG + 2*i for i in range(11)]
V_LANE = 1; V_R = 2; V_G = 3
V_WOFF = 4
V_WRD = 9
V_X = 10
V_RSTD = 14
V_T = 18
V_WF = 32
V_XF = 72
V_RAW = 32
V_ACC = 112
V_T2 = 192
NV = 224

def acc(gi, rt): return V_ACC + (gi * 4 + rt) * 4

def load_kernargs(a):
    a(f"s_load_dwordx16 s[{S_KARG}:{S_KARG+15}], s[0:1], 0")
    a(f"s_load_dwordx4 s[{S_KARG+16}:{S_KARG+19}], s[0:1], 64")
    a(f"s_load_dwordx2 s[{S_KARG+20}:{S_KARG+21}], s[0:1], 80")

def gen(a):
    kernel_header(a, NAME)
    a("s_cmp_ge_u32 s2, 256")
    a("s_cbranch_scc1 K1_END")
    load_kernargs(a)
    a(f"v_and_b32 v{V_LANE}, 63, v0")
    a(f"v_lshrrev_b32 v{V_T}, 6, v0")
    a(f"v_and_b32 v{V_R}, 15, v0")
    a(f"v_readfirstlane_b32 s{S_W}, v{V_T}")
    a(f"v_bfe_u32 v{V_G}, v0, 4, 2")
    a(f"s_and_b32 s{S_T0}, s2, 7")
    a(f"s_lshr_b32 s{S_T0+1}, s2, 3")
    a(f"s_lshr_b32 s{S_T0+2}, s{S_T0}, 2")
    a(f"s_lshl_b32 s{S_T0+2}, s{S_T0+2}, 4")
    a(f"s_lshr_b32 s{S_T0+3}, s{S_T0+1}, 1")
    a(f"s_add_u32 s{S_RB}, s{S_T0+2}, s{S_T0+3}")
    a(f"s_and_b32 s{S_T0+2}, s{S_T0}, 3")
    a(f"s_lshl_b32 s{S_T0+2}, s{S_T0+2}, 1")
    a(f"s_and_b32 s{S_T0+3}, s{S_T0+1}, 1")
    a(f"s_add_u32 s{S_CB}, s{S_T0+2}, s{S_T0+3}")
    a(f"s_lshl_b32 s{S_SLOT}, s{S_CB}, 2")
    a(f"s_add_u32 s{S_SLOT}, s{S_SLOT}, s{S_W}")
    a(f"s_lshl_b32 s{S_T0}, s{S_RB}, 6")
    a(f"s_lshl_b32 s{S_T0+1}, s{S_W}, 4")
    a(f"s_add_u32 s{S_T0}, s{S_T0}, s{S_T0+1}")
    a(f"v_add_u32 v{V_T}, s{S_T0}, v{V_R}")
    a(f"v_mul_u32_u24 v{V_T}, 1280, v{V_T}")
    a(f"v_lshl_add_u32 v{V_T}, v{V_G}, 4, v{V_T}")
    a("s_waitcnt lgkmcnt(0)")
    srd(a, S_XSRD, P_X, P_X+1, 2048*1280)
    for s in range(20):
        a(f"buffer_load_dwordx4 {vr(V_RAW+4*s,4)}, v{V_T}, s[{S_XSRD}:{S_XSRD+3}], 0 offen offset:{64*s}")
    T = S_T0
    a(f"s_cmp_lt_u32 s{S_SLOT}, 8")
    a("s_cbranch_scc1 K1_SRC_Q")
    a(f"s_cmp_lt_u32 s{S_SLOT}, 30")
    a("s_cbranch_scc1 K1_SRC_H")
    a(f"s_cmp_eq_u32 s{S_SLOT}, 30")
    a(f"s_cselect_b32 s{T}, s{P_WK}, s{P_WV}")
    a(f"s_cselect_b32 s{T+1}, s{P_WK+1}, s{P_WV+1}")
    a(f"s_mov_b32 s{T+2}, 25600")
    a(f"s_mov_b32 s{T+3}, 40")
    a(f"s_mov_b32 s{T+4}, 0")
    a(f"s_mov_b32 s{T+5}, 2")
    a("s_branch K1_SRC_DONE")
    a.label("K1_SRC_Q")
    a(f"s_mov_b32 s{T}, s{P_WQ}")
    a(f"s_mov_b32 s{T+1}, s{P_WQ+1}")
    a(f"s_mov_b32 s{T+2}, {640*1280}")
    a(f"s_mov_b32 s{T+3}, 1280")
    a(f"s_mul_i32 s{T+4}, s{S_SLOT}, 160")
    a(f"s_mov_b32 s{T+5}, 9")
    a("s_branch K1_SRC_DONE")
    a.label("K1_SRC_H")
    a(f"s_mov_b32 s{T}, s{P_W1}")
    a(f"s_mov_b32 s{T+1}, s{P_W1+1}")
    a(f"s_mov_b32 s{T+2}, {640*3456}")
    a(f"s_mov_b32 s{T+3}, 3456")
    a(f"s_sub_u32 s{T+4}, s{S_SLOT}, 8")
    a(f"s_mul_i32 s{T+4}, s{T+4}, 160")
    a(f"s_mov_b32 s{T+5}, 9")
    a.label("K1_SRC_DONE")
    a(f"s_mov_b32 s{S_WSRD}, s{T}")
    a(f"s_and_b32 s{S_WSRD+1}, s{T+1}, 0xffff")
    a(f"s_mov_b32 s{S_WSRD+2}, s{T+2}")
    a(f"s_mov_b32 s{S_WSRD+3}, 0x00020000")
    a(f"s_lshl_b32 s{S_STEP}, s{T+3}, 5")
    for jj in range(5):
        t0, t1, t2, t3 = V_T+1, V_T+2, V_T+3, V_T+4
        a(f"v_add_u32 v{t0}, {64*jj}, v{V_LANE}")
        a(f"v_mul_u32_u24 v{t1}, 6554, v{t0}")
        a(f"v_lshrrev_b32 v{t1}, 16, v{t1}")
        a(f"v_mul_u32_u24 v{t2}, 10, v{t1}")
        a(f"v_sub_u32 v{t2}, v{t0}, v{t2}")
        a(f"v_min_u32 v{t2}, s{T+5}, v{t2}")
        a(f"v_bfe_u32 v{t3}, v{t1}, 2, 2")
        a(f"v_lshlrev_b32 v{t3}, 3, v{t3}")
        a(f"v_and_b32 v{t0}, 3, v{t1}")
        a(f"v_add_u32 v{t3}, v{t3}, v{t0}")
        a(f"v_lshrrev_b32 v{t1}, 4, v{t1}")
        a(f"v_lshl_add_u32 v{t3}, v{t1}, 2, v{t3}")
        a(f"v_mul_lo_u32 v{t3}, v{t3}, s{T+3}")
        a(f"v_lshl_add_u32 v{t3}, v{t2}, 4, v{t3}")
        a(f"v_add_u32 v{V_WOFF+jj}, s{T+4}, v{t3}")
    a(f"s_mul_i32 s{S_RING}, s{S_W}, {RING}")
    a(f"s_add_u32 s{S_RING}, s{S_RING}, {X_BYTES}")
    a(f"s_mov_b32 s{S_SOFF}, 0")
    def dma(slot):
        for jj in range(5):
            a(f"s_add_u32 m0, s{S_RING}, {slot*5120 + jj*1024}")
            a("s_nop 0")
            a(f"buffer_load_dwordx4 v{V_WOFF+jj}, s[{S_WSRD}:{S_WSRD+3}], s{S_SOFF} offen lds")
        a(f"s_add_u32 s{S_SOFF}, s{S_SOFF}, s{S_STEP}")
    for st in range(3):
        dma(st)
    a(f"v_lshrrev_b32 v{V_T+1}, 2, v{V_R}")
    a(f"v_lshl_add_u32 v{V_T+1}, v{V_G}, 2, v{V_T+1}")
    a(f"v_mul_u32_u24 v{V_T+1}, 160, v{V_T+1}")
    a(f"v_and_b32 v{V_T+2}, 3, v{V_R}")
    a(f"v_lshl_add_u32 v{V_T+1}, v{V_T+2}, 3, v{V_T+1}")
    a(f"v_add_u32 v{V_WRD}, s{S_RING}, v{V_T+1}")
    for i in range(4):
        a(f"v_add_u32 v{V_T+1}, {4*i}, v{V_G}")
        a(f"v_xor_b32 v{V_T+1}, v{V_T+1}, v{V_R}")
        a(f"v_lshlrev_b32 v{V_T+1}, 4, v{V_T+1}")
        a(f"v_mul_u32_u24 v{V_T+2}, 1280, v{V_R}")
        a(f"v_add_u32 v{V_X+i}, v{V_T+1}, v{V_T+2}")
    for i in range(80):
        a(f"v_mov_b32 v{V_ACC+i}, 0")
    a(f"s_mov_b32 s{S_ONES}, 0x3f803f80")
    a(f"s_mov_b32 s{S_LO1}, 0x00003f80")
    a(f"s_mov_b32 s{S_HI1}, 0x3f800000")
    srd(a, S_OSRD, P_WS, P_WS+1, WS_SIZE)
    st = V_T2
    for i in range(8):
        a(f"v_mov_b32 v{st+i}, 0")
    a("s_waitcnt vmcnt(15)")
    for i in range(80):
        r = V_RAW + i
        a(f"v_dot2_f32_bf16 v{st + (i&3)}, v{r}, s{S_ONES}, v{st + (i&3)}")
        a(f"v_dot2_f32_bf16 v{st + 4 + (i&3)}, v{r}, v{r}, v{st + 4 + (i&3)}")
    a.nop(3)
    a(f"v_add_f32 v{st}, v{st}, v{st+1}")
    a(f"v_add_f32 v{st+2}, v{st+2}, v{st+3}")
    a(f"v_add_f32 v{st+4}, v{st+4}, v{st+5}")
    a(f"v_add_f32 v{st+6}, v{st+6}, v{st+7}")
    a(f"v_add_f32 v{st}, v{st}, v{st+2}")
    a(f"v_add_f32 v{st+4}, v{st+4}, v{st+6}")
    def xreduce(v, t, op="v_add_f32"):
        a(f"v_mov_b32 v{t}, v{v}")
        a.nop(2)
        a(f"v_permlane16_swap_b32 v{t}, v{v}")
        a.nop(1)
        a(f"{op} v{v}, v{v}, v{t}")
        a(f"v_mov_b32 v{t}, v{v}")
        a.nop(2)
        a(f"v_permlane32_swap_b32 v{t}, v{v}")
        a.nop(1)
        a(f"{op} v{v}, v{v}, v{t}")
    xreduce(st, st+1)
    xreduce(st+4, st+5)
    a(f"v_mul_f32 v{st}, {f2h(1.0/640)}, v{st}")
    a(f"v_mul_f32 v{st+4}, {f2h(1.0/640)}, v{st+4}")
    a(f"v_fma_f32 v{st+4}, -v{st}, v{st}, v{st+4}")
    a(f"v_max_f32 v{st+4}, 0, v{st+4}")
    a(f"v_add_f32 v{st+4}, 0x3727c5ac, v{st+4}")
    a(f"v_rsq_f32 v{st+5}, v{st+4}")
    a(f"v_sub_f32 v{st+2}, 0, v{st}")
    for i in range(4):
        a(f"v_mov_b32 v{V_T+1+i}, v{V_X+i}")
    a(f"s_mul_i32 s{S_T0+8}, s{S_W}, 20480")
    for i in range(4):
        a(f"v_add_u32 v{V_T+1+i}, s{S_T0+8}, v{V_T+1+i}")
    tmp = st + 8
    for s in range(20):
        for j in range(4):
            r = V_RAW + 4*s + j
            a(f"v_dot2_f32_bf16 v{tmp+2*j}, v{r}, s{S_LO1}, v{st+2}")
            a(f"v_dot2_f32_bf16 v{tmp+2*j+1}, v{r}, s{S_HI1}, v{st+2}")
        a.nop(1)
        for j in range(4):
            r = V_RAW + 4*s + j
            if j == 3: pass
            a(f"v_cvt_pk_bf16_f32 v{r}, v{tmp+2*j}, v{tmp+2*j+1}")
        a(f"ds_write_b128 v{V_T+1+(s&3)}, {vr(V_RAW+4*s,4)} offset:{(s>>2)*256}")
    a(f"s_lshl_b32 s{S_T0+8}, s{S_W}, 6")
    a(f"s_add_u32 s{S_T0+8}, s{S_T0+8}, {X_BYTES + 3*5120}")
    a(f"v_lshl_add_u32 v{V_T+5}, v{V_R}, 2, s{S_T0+8}")
    for w2 in range(4):
        a(f"ds_write_b32 v{V_T+5}, v{st+5} offset:{w2*RING}")
    a("s_waitcnt lgkmcnt(0)")
    a("s_barrier")
    a(f"s_add_u32 s{S_T0+8}, s{S_RING}, {3*5120}")
    a(f"v_lshl_add_u32 v{V_T+5}, v{V_R}, 2, s{S_T0+8}")
    for rt in range(4):
        a(f"ds_read_b32 v{V_RSTD+rt}, v{V_T+5} offset:{rt*64}")
    def reads(s4, buf, it_off):
        r = []
        for rt in range(4):
            r.append(f"ds_read_b128 {vr(V_XF+16*buf+4*rt,4)}, v{V_X+s4} offset:{rt*20480 + it_off}")
        for gi in range(5):
            for hf in range(2):
                r.append(f"ds_read_b64_tr_b16 {vr(V_WF+20*buf+4*gi+2*hf,2)}, v{V_WRD} offset:{s4*5120 + gi*32 + hf*2560}")
        return r
    a("s_waitcnt vmcnt(10) lgkmcnt(0)")
    for r in reads(0, 0, 0): a(r)
    dma(3)
    a(f"s_mov_b32 s{S_T0+9}, 5")
    a(".p2align 6")
    a.label("K1_LOOP")
    for s4 in range(4):
        buf = s4 & 1
        a("s_waitcnt vmcnt(10) lgkmcnt(0)")
        nxt = reads((s4+1) & 3, buf ^ 1, 256 if s4 == 3 else 0)
        dm = []
        for jj in range(5):
            dm.append([f"s_add_u32 m0, s{S_RING}, {s4*5120 + jj*1024}", None,
                       f"buffer_load_dwordx4 v{V_WOFF+jj}, s[{S_WSRD}:{S_WSRD+3}], s{S_SOFF} offen lds"])
        n = 0
        for gi in range(5):
            for rt in range(4):
                if n >= 10 and n % 2 == 0 and (n-10)//2 < 5:
                    a(dm[(n-10)//2][0])
                a(f"v_mfma_f32_16x16x32_bf16 {vr(acc(gi,rt),4)}, {vr(V_WF+20*buf+4*gi,4)}, {vr(V_XF+16*buf+4*rt,4)}, {vr(acc(gi,rt),4)}")
                if n >= 10 and n % 2 == 0 and (n-10)//2 < 5:
                    a(dm[(n-10)//2][2])
                if n < 14:
                    a(nxt[n])
                n += 1
        a(f"s_add_u32 s{S_SOFF}, s{S_SOFF}, s{S_STEP}")
    for i in range(4):
        a(f"v_add_u32 v{V_X+i}, 256, v{V_X+i}")
    a(f"s_sub_u32 s{S_T0+9}, s{S_T0+9}, 1")
    a(f"s_cmp_lg_u32 s{S_T0+9}, 0")
    a("s_cbranch_scc1 K1_LOOP")
    a("s_waitcnt vmcnt(0) lgkmcnt(0)")
    a.nop(8)
    a(f"s_cmp_lt_u32 s{S_SLOT}, 8")
    a("s_cbranch_scc1 K1_EPI_Q")
    a(f"s_cmp_lt_u32 s{S_SLOT}, 30")
    a("s_cbranch_scc1 K1_EPI_H")
    a(f"s_cmp_eq_u32 s{S_SLOT}, 30")
    a("s_cbranch_scc1 K1_EPI_K")
    a("s_branch K1_EPI_V")
    O = f"s[{S_OSRD}:{S_OSRD+3}]"
    T = S_T0
    a.label("K1_EPI_H")
    a(f"s_sub_u32 s{T}, s{S_SLOT}, 8")
    a(f"s_mul_i32 s{T}, s{T}, 5")
    a(f"s_lshl_b32 s{T+1}, s{S_RB}, 2")
    a(f"s_mul_i32 s{T+1}, s{T+1}, {54*1024}")
    a(f"s_add_u32 s{T+1}, s{T+1}, {HF_OFF}")
    a(f"v_lshlrev_b32 v{V_T}, 4, v{V_LANE}")
    for gi in range(5):
        a(f"s_add_u32 s{T+2}, s{T}, {gi}")
        if gi >= 3:
            a(f"s_cmp_ge_u32 s{T+2}, 108")
            a("s_cbranch_scc1 K1_END_WAIT")
        a(f"s_lshr_b32 s{T+3}, s{T+2}, 1")
        a(f"s_lshl_b32 s{T+3}, s{T+3}, 10")
        a(f"s_and_b32 s{T+4}, s{T+2}, 1")
        a(f"s_lshl_b32 s{T+4}, s{T+4}, 3")
        a(f"s_add_u32 s{T+3}, s{T+3}, s{T+4}")
        a(f"s_add_u32 s{T+3}, s{T+3}, s{T+1}")
        for rt in range(4):
            c = acc(gi, rt)
            for j in range(4):
                a(f"v_mul_f32 v{c+j}, v{c+j}, v{V_RSTD+rt}")
            a(f"v_cvt_pk_bf16_f32 v{c}, v{c}, v{c+1}")
            a(f"v_cvt_pk_bf16_f32 v{c+1}, v{c+2}, v{c+3}")
            a(f"v_pk_max_i16 v{c}, v{c}, 0")
            a(f"v_pk_max_i16 v{c+1}, v{c+1}, 0")
            a(f"buffer_store_dwordx2 {vr(c,2)}, v{V_T}, {O}, s{T+3} offen")
            if rt < 3:
                a(f"s_add_u32 s{T+3}, s{T+3}, {54*1024}")
    a("s_branch K1_END_WAIT")
    a.label("K1_EPI_Q")
    a(f"s_lshl_b32 s{T}, s{S_RB}, 6")
    a(f"s_lshl_b32 s{T+1}, s{S_SLOT}, 2")
    a(f"s_add_u32 s{T}, s{T}, s{T+1}")
    a(f"s_mul_i32 s{T}, s{T}, 1280")
    if QF_OFF: a(f"s_add_u32 s{T}, s{T}, {QF_OFF}")
    a(f"s_add_u32 s{T+1}, s{T}, {32*1280}")
    for rt in range(4):
        a(f"v_mul_f32 v{V_RSTD+rt}, {f2h(QSCALE)}, v{V_RSTD+rt}")
    def piece_addr(q4reg, dst, dmul, hl_stride, tailoff):
        t0, t1, t2 = V_T+1, V_T+2, V_T+3
        a(f"v_mul_u32_u24 v{t0}, 52, v{q4reg}")
        a(f"v_lshrrev_b32 v{t0}, 8, v{t0}")
        a(f"v_mul_u32_u24 v{t1}, 5, v{t0}")
        a(f"v_sub_u32 v{t1}, v{q4reg}, v{t1}")
        a(f"v_mul_u32_u24 v{t0}, {hl_stride}, v{t0}")
        a(f"v_lshrrev_b32 v{t2}, 1, v{t1}")
        a(f"v_lshlrev_b32 v{t2}, 9, v{t2}")
        a(f"v_add_u32 v{t0}, v{t0}, v{t2}")
        a(f"v_and_b32 v{t2}, 1, v{t1}")
        a(f"v_lshl_add_u32 v{t0}, v{t2}, 3, v{t0}")
        a(f"v_cmp_eq_u32 vcc, 4, v{t1}")
        a.nop(2)
        a(f"v_cndmask_b32 v{t2}, 4, 3, vcc")
        a.nop(1)
        a(f"v_lshlrev_b32 v{t1}, v{t2}, v{V_R}")
        a(f"v_add_u32 v{dst}, v{t0}, v{t1}")
        a(f"v_lshlrev_b32 v{dmul}, v{t2}, v{V_T+6}")
    a(f"v_mov_b32 v{V_T+6}, 16")
    for gi in range(5):
        a(f"v_add_u32 v{V_T+4}, {4*gi}, v{V_G}")
        piece_addr(V_T+4, V_T2+2*gi, V_T2+2*gi+1, 1280, 1024)
        a(f"v_add_u32 v{V_T2+2*gi+1}, v{V_T2+2*gi}, v{V_T2+2*gi+1}")
    for gi in range(5):
        for rt in range(4):
            c = acc(gi, rt)
            for j in range(4):
                a(f"v_mul_f32 v{c+j}, v{c+j}, v{V_RSTD+rt}")
            a(f"v_cvt_pk_bf16_f32 v{c}, v{c}, v{c+1}")
            a(f"v_cvt_pk_bf16_f32 v{c+1}, v{c+2}, v{c+3}")
            a(f"buffer_store_dwordx2 {vr(c,2)}, v{V_T2+2*gi+(rt&1)}, {O}, s{T+(rt>>1)} offen")
    a("s_branch K1_END_WAIT")
    a.label("K1_EPI_K")
    a(f"s_mul_i32 s{T}, s{S_RB}, {2*KV_TILE}")
    a(f"s_add_u32 s{T}, s{T}, {KV_OFF}")
    a(f"s_add_u32 s{T+1}, s{T}, {KV_TILE}")
    a(f"v_mov_b32 v{V_T+6}, 16")
    for gi in range(2):
        a(f"v_add_u32 v{V_T+4}, {4*gi}, v{V_G}")
        piece_addr(V_T+4, V_T2+2*gi, V_T2+2*gi+1, 0, 1024)
        a(f"v_add_u32 v{V_T2+2*gi+1}, v{V_T2+2*gi}, v{V_T2+2*gi+1}")
    a(f"v_cmp_eq_u32 vcc, 0, v{V_G}")
    a(f"v_mov_b32 v{V_T+7}, {OOB}")
    a.nop(1)
    a(f"v_cndmask_b32 v{V_T2+2}, v{V_T+7}, v{V_T2+2}, vcc")
    a(f"v_cndmask_b32 v{V_T2+3}, v{V_T+7}, v{V_T2+3}, vcc")
    a(f"v_mov_b32 v{V_T2+8}, 0")
    for rt in range(4):
        nrm = V_T2+9
        for gi in range(2):
            c = acc(gi, rt)
            for j in range(4):
                a(f"v_mul_f32 v{c+j}, v{c+j}, v{V_RSTD+rt}")
        c0, c1 = acc(0, rt), acc(1, rt)
        a(f"v_mul_f32 v{nrm}, v{c0}, v{c0}")
        for j in range(1, 4): a(f"v_fmac_f32 v{nrm}, v{c0+j}, v{c0+j}")
        a(f"v_mul_f32 v{nrm+1}, v{c1}, v{c1}")
        for j in range(1, 4): a(f"v_fmac_f32 v{nrm+1}, v{c1+j}, v{c1+j}")
        a(f"v_cndmask_b32 v{nrm+1}, 0, v{nrm+1}, vcc")
        a(f"v_add_f32 v{nrm}, v{nrm}, v{nrm+1}")
        xreduce(nrm, nrm+1)
        a(f"v_max_f32 v{V_T2+8}, v{V_T2+8}, v{nrm}")
        for gi in range(2):
            c = acc(gi, rt)
            a(f"v_cvt_pk_bf16_f32 v{c}, v{c}, v{c+1}")
            a(f"v_cvt_pk_bf16_f32 v{c+1}, v{c+2}, v{c+3}")
            a(f"buffer_store_dwordx2 {vr(c,2)}, v{V_T2+2*gi+(rt&1)}, {O}, s{T+(rt>>1)} offen")
    a(f"v_lshlrev_b32 v{V_T+1}, 3, v{V_LANE}")
    a(f"v_add_u32 v{V_T+1}, {1024+256}, v{V_T+1}")
    a(f"v_cmp_gt_u32 vcc, 32, v{V_LANE}")
    a(f"v_mov_b32 v{V_T+2}, 0x3f803f80")
    a(f"v_mov_b32 v{V_T+3}, 0x00003f80")
    a(f"v_cndmask_b32 v{V_T+1}, v{V_T+7}, v{V_T+1}, vcc")
    for tt in range(2):
        a(f"buffer_store_dwordx2 {vr(V_T+2,2)}, v{V_T+1}, {O}, s{T+tt} offen")
    def rowmax(v, t):
        for sh in (8, 4, 2, 1):
            a.nop(2)
            a(f"v_max_f32_dpp v{v}, v{v}, v{v} row_ror:{sh} row_mask:0xf bank_mask:0xf")
    rowmax(V_T2+8, V_T2+9)
    a(f"s_lshl_b32 s{T+2}, s{S_RB}, 2")
    a(f"s_add_u32 s{T+2}, s{T+2}, {ST_OFF}")
    a(f"v_cmp_eq_u32 vcc, 0, v{V_LANE}")
    a(f"v_mov_b32 v{V_T+1}, 0")
    a.nop(1)
    a(f"v_cndmask_b32 v{V_T+1}, v{V_T+7}, v{V_T+1}, vcc")
    a(f"buffer_store_dword v{V_T2+8}, v{V_T+1}, {O}, s{T+2} offen")
    a("s_branch K1_END_WAIT")
    a.label("K1_EPI_V")
    a(f"s_mul_i32 s{T}, s{S_RB}, {2*KV_TILE}")
    a(f"s_add_u32 s{T}, s{T}, {KV_OFF + 1536}")
    a(f"v_lshrrev_b32 v{V_T+1}, 3, v{V_R}")
    a(f"v_lshlrev_b32 v{V_T+1}, 9, v{V_T+1}")
    a(f"v_and_b32 v{V_T+2}, 7, v{V_R}")
    a(f"v_lshl_add_u32 v{V_T+1}, v{V_T+2}, 1, v{V_T+1}")
    a(f"v_lshl_add_u32 v{V_T+1}, v{V_G}, 6, v{V_T+1}")
    a(f"v_mov_b32 v{V_T+7}, {OOB}")
    a(f"v_cmp_eq_u32 vcc, 0, v{V_G}")
    a(f"v_add_u32 v{V_T+2}, 256, v{V_T+1}")
    a.nop(1)
    a(f"v_cndmask_b32 v{V_T+2}, v{V_T+7}, v{V_T+2}, vcc")
    a(f"v_mov_b32 v{V_T2+8}, 0")
    for rt in range(4):
        a(f"s_add_u32 s{T+1}, s{T}, {(rt>>1)*KV_TILE + (rt&1)*1024}")
        for gi in range(2):
            c = acc(gi, rt)
            for j in range(4):
                a(f"v_mul_f32 v{c+j}, v{c+j}, v{V_RSTD+rt}")
            if gi == 0:
                a(f"v_max3_f32 v{V_T2+8}, |v{c}|, |v{c+1}|, v{V_T2+8}")
                a(f"v_max3_f32 v{V_T2+8}, |v{c+2}|, |v{c+3}|, v{V_T2+8}")
            else:
                a(f"v_max3_f32 v{V_T2+9}, |v{c}|, |v{c+1}|, |v{c+2}|")
                a(f"v_max_f32 v{V_T2+9}, v{V_T2+9}, |v{c+3}|".replace("v_max_f32", "v_max_f32_e64"))
                a(f"v_cndmask_b32 v{V_T2+9}, 0, v{V_T2+9}, vcc")
                a(f"v_max_f32 v{V_T2+8}, v{V_T2+8}, v{V_T2+9}")
            a(f"v_cvt_pk_bf16_f32 v{c}, v{c}, v{c+1}")
            a(f"v_cvt_pk_bf16_f32 v{c+2}, v{c+2}, v{c+3}")
            ad = V_T+1+gi
            a(f"buffer_store_short v{c}, v{ad}, {O}, s{T+1} offen")
            a(f"buffer_store_short_d16_hi v{c}, v{ad}, {O}, s{T+1} offen offset:16")
            a(f"buffer_store_short v{c+2}, v{ad}, {O}, s{T+1} offen offset:32")
            a(f"buffer_store_short_d16_hi v{c+2}, v{ad}, {O}, s{T+1} offen offset:48")
    a(f"v_cmp_lt_u32 vcc, 11, v{V_LANE}")
    a.nop(2)
    a(f"v_cndmask_b32 v{V_T+3}, 0, 1, vcc")
    a(f"v_mul_u32_u24 v{V_T+4}, 12, v{V_T+3}")
    a(f"v_sub_u32 v{V_T+4}, v{V_LANE}, v{V_T+4}")
    a(f"v_cmp_eq_u32 vcc, 0, v{V_T+4}")
    a(f"v_add_u32 v{V_T+4}, 20, v{V_T+4}")
    a(f"v_lshl_add_u32 v{V_T+4}, v{V_T+3}, 5, v{V_T+4}")
    a(f"v_lshlrev_b32 v{V_T+4}, 4, v{V_T+4}")
    a(f"v_mov_b32 v{V_T+5}, 0x3f803f80")
    a(f"v_cndmask_b32 v{V_T2}, 0, v{V_T+5}, vcc")
    a(f"v_mov_b32 v{V_T2+1}, v{V_T2}")
    a(f"v_mov_b32 v{V_T2+2}, v{V_T2}")
    a(f"v_mov_b32 v{V_T2+3}, v{V_T2}")
    a(f"v_cmp_gt_u32 vcc, 24, v{V_LANE}")
    a.nop(2)
    a(f"v_cndmask_b32 v{V_T+4}, v{V_T+7}, v{V_T+4}, vcc")
    for tt in range(2):
        for t in range(2):
            a(f"s_add_u32 s{T+1}, s{T}, {tt*KV_TILE + t*1024}")
            a(f"buffer_store_dwordx4 {vr(V_T2,4)}, v{V_T+4}, {O}, s{T+1} offen")
    xreduce(V_T2+8, V_T2+9, "v_max_f32")
    rowmax(V_T2+8, V_T2+9)
    a(f"s_lshl_b32 s{T+2}, s{S_RB}, 2")
    a(f"s_add_u32 s{T+2}, s{T+2}, {ST_OFF + 128}")
    a(f"v_cmp_eq_u32 vcc, 0, v{V_LANE}")
    a(f"v_mov_b32 v{V_T+1}, 0")
    a.nop(1)
    a(f"v_cndmask_b32 v{V_T+1}, v{V_T+7}, v{V_T+1}, vcc")
    a(f"buffer_store_dword v{V_T2+8}, v{V_T+1}, {O}, s{T+2} offen")
    a.label("K1_END_WAIT")
    a("s_waitcnt vmcnt(0)")
    a.label("K1_END")
    a("s_endpgm")
    return kernel_desc(NAME, NV)
```

```python
from asmlib import *
import struct
def f2h(x): return hex(struct.unpack('<I', struct.pack('<f', x))[0])

NAME = "k2_attn_kernel"
LDS = 73728
S_SRD = 4
S_RB = 8; S_HG = 9; S_W = 10; S_KV = 11; S_IT = 12
S_T = 16
S_WS = 32
V_LANE = 1; V_IDX = 2; V_O16 = 3; V_O8 = 4; V_T = 5
V_Q1 = 12; V_Q2 = 44; V_S = (60, 76); V_K = 92; V_V = 104; V_T2 = 120
NV = 128; NA = 128
def Q1(t): return vr(V_Q1 + 4*t, 4)
def Q2(t): return vr(V_Q2 + 2*t, 2)
def K1(b): return vr(V_K + 6*b, 4)
def K2(b): return vr(V_K + 6*b + 4, 2)
def VF(b, t): return vr(V_V + 8*b + 4*t, 4)
def O(t): return ar(16*t, 16)
SRD = f"s[{S_SRD}:{S_SRD+3}]"

def kv_loads(b, part):
    if part == "k":
        return [f"buffer_load_dwordx4 {K1(b)}, v{V_O16}, {SRD}, s{S_KV} offen",
                f"buffer_load_dwordx2 {K2(b)}, v{V_O8}, {SRD}, s{S_KV} offen offset:1024"]
    return [f"buffer_load_dwordx4 {VF(b,0)}, v{V_O16}, {SRD}, s{S_KV} offen offset:1536",
            f"buffer_load_dwordx4 {VF(b,1)}, v{V_O16}, {SRD}, s{S_KV} offen offset:2560"]

def qk(a, sbuf, t, kb):
    S = vr(V_S[sbuf], 16)
    return [f"v_mfma_f32_32x32x16_bf16 {S}, {K1(kb)}, {Q1(t)}, 0",
            f"v_mfma_f32_32x32x8_bf16 {S}, {K2(kb)}, {Q2(t)}, {S}"]

def slot(a, hf, t):
    X = V_S[t & 1]; Y = V_S[(t+1) & 1]
    E = lambda i: f"v_exp_f32 v{X+i}, v{X+i}"
    m1, m2 = qk(a, (t+1) & 1, (t+1) % 8, hf ^ 1 if t == 7 else hf)
    pv1 = f"v_smfmac_f32_32x32x32_bf16 {O((t-1) % 8)}, {VF(hf ^ 1 if t == 0 else hf, 1)}, {vr(Y+8, 8)}, v{V_IDX}"
    pv0 = f"v_smfmac_f32_32x32x32_bf16 {O(t)}, {VF(hf, 0)}, {vr(X, 8)}, v{V_IDX}"
    if t == 7:
        a("s_waitcnt vmcnt(0)")
    a(E(0)); a(E(1))
    a(pv1)
    a(E(2))
    if t == 0:
        a(f"s_add_u32 s{S_KV}, s{S_KV}, {KV_TILE}")
    a(E(3))
    if t == 0:
        a(kv_loads(hf ^ 1, "k")[0])
    if t == 1:
        a(kv_loads(hf ^ 1, "v")[0])
    a(E(4))
    a(m1)
    a(E(5))
    if t == 0:
        a(kv_loads(hf ^ 1, "k")[1])
    if t == 1:
        a(kv_loads(hf ^ 1, "v")[1])
    a(E(6)); a(E(7))
    a(m2)
    for i in range(8, 14): a(E(i))
    a(pv0)
    a(E(14)); a(E(15))

def halfmax(a, v, t):
    for sh in (8, 4, 2, 1):
        a.nop(2)
        a(f"v_max_f32_dpp v{v}, v{v}, v{v} row_ror:{sh} row_mask:0xf bank_mask:0xf")
    a(f"v_mov_b32 v{t}, v{v}")
    a.nop(2)
    a(f"v_permlane16_swap_b32 v{t}, v{v}")
    a.nop(1)
    a(f"v_max_f32 v{v}, v{v}, v{t}")

def gen(a):
    kernel_header(a, NAME)
    a("s_cmp_ge_u32 s2, 256")
    a("s_cbranch_scc1 K2_END")
    a(f"s_load_dwordx2 s[{S_WS}:{S_WS+1}], s[0:1], 80")
    a(f"v_and_b32 v{V_LANE}, 63, v0")
    a(f"v_lshrrev_b32 v{V_T}, 6, v0")
    a(f"v_lshlrev_b32 v{V_O16}, 4, v{V_LANE}")
    a(f"v_readfirstlane_b32 s{S_W}, v{V_T}")
    a(f"v_lshlrev_b32 v{V_O8}, 3, v{V_LANE}")
    a(f"s_lshr_b32 s{S_RB}, s2, 2")
    a(f"s_and_b32 s{S_HG}, s2, 3")
    a(f"v_cmp_gt_u32 vcc, 32, v{V_LANE}")
    a(f"v_add_u32 v{V_T+1}, 1024, v{V_O8}")
    a(f"v_mov_b32 v{V_T+2}, {OOB}")
    a(f"v_cndmask_b32 v{V_T+1}, v{V_T+2}, v{V_T+1}, vcc")
    a(f"v_lshlrev_b32 v{V_T+3}, 2, v{V_LANE}")
    a(f"s_lshl_b32 s{S_T}, s{S_RB}, 5")
    a(f"s_lshl_b32 s{S_T+1}, s{S_HG}, 3")
    a(f"s_add_u32 s{S_T}, s{S_T}, s{S_T+1}")
    a(f"s_mul_i32 s{S_T}, s{S_T}, 1280")
    if QF_OFF: a(f"s_add_u32 s{S_T}, s{S_T}, {QF_OFF}")
    a(f"s_mul_i32 s{S_KV}, s{S_W}, {16*KV_TILE}")
    a(f"s_add_u32 s{S_KV}, s{S_KV}, {KV_OFF}")
    a(f"s_mov_b32 s{S_T+2}, {ST_OFF}")
    a("s_waitcnt lgkmcnt(0)")
    srd(a, S_SRD, S_WS, S_WS+1, WS_SIZE)
    for t in range(8):
        a(f"buffer_load_dwordx4 {Q1(t)}, v{V_O16}, {SRD}, s{S_T} offen")
        a(f"buffer_load_dwordx2 {Q2(t)}, v{V_T+1}, {SRD}, s{S_T} offen")
        if t < 7: a(f"s_add_u32 s{S_T}, s{S_T}, 1280")
    a(f"buffer_load_dword v{V_T+4}, v{V_T+3}, {SRD}, s{S_T+2} offen")
    for l in kv_loads(0, "k") + kv_loads(0, "v"): a(l)
    for i in range(128): a(f"v_accvgpr_write_b32 a{i}, 0")
    for i in range(16): a(f"v_mov_b32 v{V_S[1]+i}, 0")
    for i in range(8): a(f"v_mov_b32 v{V_V+8+i}, 0")
    a(f"v_mov_b32 v{V_IDX}, 0xdddddddd")
    a("s_waitcnt vmcnt(4)")
    qm = V_T2; tq = V_T2+1
    a(f"v_mov_b32 v{qm}, 0")
    for t in range(8):
        a(f"v_mov_b32 v{tq}, 0")
        a.nop(1)
        for j in range(4):
            a(f"v_dot2_f32_bf16 v{tq}, v{V_Q1+4*t+j}, v{V_Q1+4*t+j}, v{tq}")
        for j in range(2):
            a(f"v_dot2_f32_bf16 v{tq}, v{V_Q2+2*t+j}, v{V_Q2+2*t+j}, v{tq}")
        a.nop(3)
        a(f"v_max_f32 v{qm}, v{qm}, v{tq}")
    halfmax(a, qm, tq)
    a(f"v_mov_b32 v{tq}, v{qm}")
    a.nop(2)
    a(f"v_permlane32_swap_b32 v{tq}, v{qm}")
    a.nop(1)
    a(f"v_add_f32 v{qm}, v{qm}, v{tq}")
    st = V_T+4
    halfmax(a, st, tq)
    a(f"v_mov_b32 v{tq}, v{st}")
    a.nop(2)
    a(f"v_permlane32_swap_b32 v{tq}, v{st}")
    a.nop(1)
    a(f"v_mul_f32 v{qm}, v{qm}, v{tq}")
    a(f"v_mov_b32 v{V_T2+2}, {f2h(2.0**40)}")
    a(f"v_cmp_ge_f32 vcc, {f2h(3600.0/1.03)}, v{qm}")
    a(f"v_cmp_ge_f32 s[{S_T+4}:{S_T+5}], v{V_T2+2}, v{st}")
    a.nop(4)
    a(f"s_and_b64 s[{S_T+4}:{S_T+5}], s[{S_T+4}:{S_T+5}], vcc")
    a("s_cbranch_scc0 K2_FALLBACK")
    a.label("K2_JOIN")
    a("s_waitcnt vmcnt(0)")
    for l in qk(a, 0, 0, 0): a(l)
    a.nop(12)
    a(f"s_mov_b32 s{S_IT}, 8")
    a(".p2align 6")
    a.label("K2_LOOP")
    for hf in range(2):
        for t in range(8):
            slot(a, hf, t)
    a(f"s_sub_u32 s{S_IT}, s{S_IT}, 1")
    a(f"s_cmp_lg_u32 s{S_IT}, 0")
    a("s_cbranch_scc1 K2_LOOP")
    a.nop(1)
    a(f"v_smfmac_f32_32x32x32_bf16 {O(7)}, {VF(1, 1)}, {vr(V_S[1]+8, 8)}, v{V_IDX}")
    a("s_waitcnt vmcnt(0)")
    a.nop(16)
    own = 12; oth = 36
    for d in range(4):
        a(f"s_cmp_eq_u32 s{S_W}, {d}")
        a(f"s_cbranch_scc1 K2_OWN{d}")
        a(f"s_sub_u32 s{S_T}, s{S_W}, {d+1}")
        a(f"s_and_b32 s{S_T}, s{S_T}, 3")
        a(f"s_mul_i32 s{S_T}, s{S_T}, 6144")
        a(f"s_add_u32 s{S_T}, s{S_T}, {d*18432}")
        a(f"v_add_u32 v{V_T}, s{S_T}, v{V_O16}")
        for e in range(2):
            for i in range(3):
                a(f"ds_write_b128 v{V_T}, {ar(16*(2*d+e) + 4*i, 4)} offset:{(e*3+i)*1024}")
        a(f"s_branch K2_NEXT{d}")
        a.label(f"K2_OWN{d}")
        for e in range(2):
            for i in range(12):
                a(f"v_accvgpr_read_b32 v{own + e*12 + i}, a{16*(2*d+e) + i}")
        a.label(f"K2_NEXT{d}")
    a("s_waitcnt lgkmcnt(0)")
    a("s_barrier")
    a(f"s_mul_i32 s{S_T}, s{S_W}, 18432")
    a(f"v_add_u32 v{V_T}, s{S_T}, v{V_O16}")
    for sl in range(3):
        for k in range(6):
            a(f"ds_read_b128 {vr(oth + sl*24 + k*4, 4)}, v{V_T} offset:{sl*6144 + k*1024}")
    n = V_T+1; h = V_T+2
    a(f"v_and_b32 v{n}, 31, v{V_LANE}")
    a(f"v_lshrrev_b32 v{h}, 5, v{V_LANE}")
    a(f"v_lshrrev_b32 v{V_T+3}, 4, v{n}")
    a(f"s_lshl_b32 s{S_T+1}, s{S_RB}, 1")
    a(f"v_add_u32 v{V_T+3}, s{S_T+1}, v{V_T+3}")
    a(f"v_mul_u32_u24 v{V_T+3}, {20*1024}, v{V_T+3}")
    a(f"v_and_b32 v{V_T+4}, 15, v{n}")
    a(f"v_lshl_add_u32 v{V_T+3}, v{V_T+4}, 4, v{V_T+3}")
    a(f"v_add_u32 v{V_T+3}, {OF_OFF}, v{V_T+3}")
    a(f"s_lshl_b32 s{S_T+2}, s{S_HG}, 3")
    a(f"s_lshl_b32 s{S_T+3}, s{S_W}, 1")
    a(f"s_add_u32 s{S_T+2}, s{S_T+2}, s{S_T+3}")
    a(f"s_mul_i32 s{S_T+2}, s{S_T+2}, 5")
    ad = 108
    a(f"v_cmp_gt_u32 vcc, 32, v{V_LANE}")
    a(f"v_mov_b32 v{V_T2+1}, {OOB}")
    for e in range(2):
        for i in range(3):
            q = V_T2+2; t1 = V_T2+3; dst = ad + e*3 + i
            a(f"s_add_u32 s{S_T+3}, s{S_T+2}, {5*e + 2*i}")
            a(f"v_add_u32 v{q}, s{S_T+3}, v{h}")
            a(f"v_lshrrev_b32 v{t1}, 3, v{q}")
            a(f"v_lshl_add_u32 v{dst}, v{t1}, 10, v{V_T+3}")
            a(f"v_and_b32 v{t1}, 3, v{q}")
            a(f"v_lshl_add_u32 v{dst}, v{t1}, 8, v{dst}")
            a(f"v_bfe_u32 v{t1}, v{q}, 2, 1")
            a(f"v_lshl_add_u32 v{dst}, v{t1}, 3, v{dst}")
            if i == 2:
                a(f"v_cndmask_b32 v{dst}, v{V_T2+1}, v{dst}, vcc")
    a("s_waitcnt lgkmcnt(0)")
    for k in range(24):
        a(f"v_add_f32 v{own+k}, v{own+k}, v{oth+k}")
        a(f"v_add_f32 v{oth+24+k}, v{oth+24+k}, v{oth+48+k}")
    for k in range(24):
        a(f"v_add_f32 v{own+k}, v{own+k}, v{oth+24+k}")
    for e in range(2):
        b = own + e*12
        l = V_T2+2; t1 = V_T2+3
        a(f"v_mov_b32 v{l}, v{b+8}")
        a(f"v_mov_b32 v{t1}, v{b+8}")
        a.nop(2)
        a(f"v_permlane32_swap_b32 v{t1}, v{l}")
        a.nop(1)
        a(f"v_rcp_f32 v{l}, v{l}")
        a.nop(1)
        for k in range(12):
            a(f"v_mul_f32 v{b+k}, v{b+k}, v{l}")
        for i in range(3):
            a(f"v_cvt_pk_bf16_f32 v{b+4*i}, v{b+4*i}, v{b+4*i+1}")
            a(f"v_cvt_pk_bf16_f32 v{b+4*i+1}, v{b+4*i+2}, v{b+4*i+3}")
            a(f"buffer_store_dwordx2 {vr(b+4*i,2)}, v{ad+e*3+i}, {SRD}, 0 offen")
    a("s_waitcnt vmcnt(0)")
    a.label("K2_END")
    a("s_endpgm")
    a.label("K2_FALLBACK")
    M = V_T2
    for t in range(8): a(f"v_mov_b32 v{M+t}, 0xff800000")
    a("s_waitcnt vmcnt(0)")
    a(f"s_mov_b32 s{S_IT}, 16")
    a(f"s_mov_b32 s{S_T+6}, s{S_KV}")
    a.label("K2_FB_LOOP")
    for l in kv_loads(0, "k"): a(l)
    a("s_waitcnt vmcnt(0)")
    for t in range(8):
        for l in qk(a, 0, t, 0): a(l)
        a.nop(14)
        S = V_S[0]
        for i in range(8):
            a(f"v_max3_f32 v{M+t}, v{S+2*i}, v{S+2*i+1}, v{M+t}")
        a.nop(2)
    a(f"s_add_u32 s{S_KV}, s{S_KV}, {KV_TILE}")
    a(f"s_sub_u32 s{S_IT}, s{S_IT}, 1")
    a(f"s_cmp_lg_u32 s{S_IT}, 0")
    a("s_cbranch_scc1 K2_FB_LOOP")
    a(f"s_mov_b32 s{S_KV}, s{S_T+6}")
    for l in kv_loads(0, "k"): a(l)
    a(f"s_lshl_b32 s{S_T}, s{S_W}, 11")
    a(f"v_lshlrev_b32 v{V_T}, 2, v{V_LANE}")
    a(f"v_add_u32 v{V_T+1}, s{S_T}, v{V_T}")
    for t in range(8):
        a(f"v_mov_b32 v{V_T+2}, v{M+t}")
        a.nop(2)
        a(f"v_permlane32_swap_b32 v{V_T+2}, v{M+t}")
        a.nop(1)
        a(f"v_max_f32 v{M+t}, v{M+t}, v{V_T+2}")
        a(f"ds_write_b32 v{V_T+1}, v{M+t} offset:{t*256}")
    a("s_waitcnt lgkmcnt(0)")
    a("s_barrier")
    S = V_S[0]
    a(f"v_cmp_gt_u32 vcc, 32, v{V_LANE}")
    for t in range(8):
        for w2 in range(4):
            a(f"ds_read_b32 v{S+w2}, v{V_T} offset:{w2*2048 + t*256}")
        a("s_waitcnt lgkmcnt(0)")
        a(f"v_max3_f32 v{S}, v{S}, v{S+1}, v{S+2}")
        a(f"v_max_f32 v{S}, v{S}, v{S+3}")
        a(f"v_sub_f32 v{S}, 0, v{S}")
        a(f"v_cvt_pk_bf16_f32 v{S+4}, v{S}, v{S}")
        a(f"v_and_b32 v{S+5}, 0xffff0000, v{S+4}")
        a(f"v_sub_f32 v{S+6}, v{S}, v{S+5}")
        a(f"v_cvt_pk_bf16_f32 v{S+7}, v{S+6}, v{S+6}")
        a(f"v_and_b32 v{S+8}, 0xffff0000, v{S+7}")
        a(f"v_sub_f32 v{S+9}, v{S+6}, v{S+8}")
        a(f"v_cvt_pk_bf16_f32 v{S+9}, v{S+9}, 0")
        a(f"v_lshrrev_b32 v{S+5}, 16, v{S+5}")
        a(f"v_or_b32 v{S+5}, v{S+5}, v{S+8}")
        a(f"v_cndmask_b32 v{V_Q2+2*t}, v{S+5}, v{V_Q2+2*t}, vcc")
        a(f"v_cndmask_b32 v{V_Q2+2*t+1}, v{S+9}, v{V_Q2+2*t+1}, vcc")
    a("s_barrier")
    a.nop(2)
    a("s_branch K2_JOIN")
    return kernel_desc(NAME, NV, NA)
```

```python
from asmlib import *
import struct
def f2h(x): return hex(struct.unpack('<I', struct.pack('<f', x))[0])

NAME = "k3_out_kernel"
NS = 4
STAGE = 36864
LDS = NS * STAGE
LOG2E = 1.4426950408889634
S_WSRD = 4; S_ASRD = 8; S_XSRD = 12; S_OSRD = 16
S_RB = 20; S_CB = 21; S_W = 22; S_I = 23; S_PF = 24; S_SW = 25; S_SA = 26; S_SLOT = 27; S_PSLOT = 28; S_R16 = 29
S_T = 32
S_KARG = 44
P_X, P_WQ, P_WK, P_WV, P_WO, P_BX, P_W1, P_W2, P_OUT, P_DBG, P_WS = [S_KARG + 2*i for i in range(11)]
V_LANE = 1; V_R = 2; V_G = 3; V_WOFF = 4
V_O16 = 9; V_WRD0 = 10; V_ARD0 = 11; V_WRD = 12; V_ARD = 13; V_T = 14
V_X = 24
V_OADDR = 34
V_WF = 36
V_AF = 76
V_ACC = 84
V_Y = 104
NV = 128

def gen(a):
    kernel_header(a, NAME)
    a("s_cmp_ge_u32 s2, 256")
    a("s_cbranch_scc1 K3_END")
    a(f"s_load_dwordx16 s[{S_KARG}:{S_KARG+15}], s[0:1], 0")
    a(f"s_load_dwordx4 s[{S_KARG+16}:{S_KARG+19}], s[0:1], 64")
    a(f"s_load_dwordx2 s[{S_KARG+20}:{S_KARG+21}], s[0:1], 80")
    a(f"v_and_b32 v{V_LANE}, 63, v0")
    a(f"v_lshrrev_b32 v{V_T}, 6, v0")
    a(f"v_and_b32 v{V_R}, 15, v0")
    a(f"v_readfirstlane_b32 s{S_W}, v{V_T}")
    a(f"v_bfe_u32 v{V_G}, v0, 4, 2")
    a(f"v_lshlrev_b32 v{V_O16}, 4, v{V_LANE}")
    T = S_T
    a(f"s_and_b32 s{T}, s2, 7")
    a(f"s_lshr_b32 s{T+1}, s2, 3")
    a(f"s_lshr_b32 s{T+2}, s{T}, 1")
    a(f"s_lshl_b32 s{T+2}, s{T+2}, 3")
    a(f"s_lshr_b32 s{T+3}, s{T+1}, 2")
    a(f"s_add_u32 s{S_RB}, s{T+2}, s{T+3}")
    a(f"s_and_b32 s{T+2}, s{T}, 1")
    a(f"s_lshl_b32 s{T+2}, s{T+2}, 2")
    a(f"s_and_b32 s{T+3}, s{T+1}, 3")
    a(f"s_add_u32 s{S_CB}, s{T+2}, s{T+3}")
    a(f"s_lshl_b32 s{S_R16}, s{S_RB}, 2")
    a(f"s_add_u32 s{S_R16}, s{S_R16}, s{S_W}")
    a(f"s_mul_i32 s{T}, s{S_CB}, 160")
    for jj in range(5):
        t0, t1, t2 = V_T+1, V_T+2, V_T+3
        a(f"v_add_u32 v{t0}, {64*jj}, v{V_LANE}")
        a(f"v_mul_u32_u24 v{t1}, 6554, v{t0}")
        a(f"v_lshrrev_b32 v{t1}, 16, v{t1}")
        a(f"v_mul_u32_u24 v{t2}, 10, v{t1}")
        a(f"v_sub_u32 v{t2}, v{t0}, v{t2}")
        a(f"v_mul_u32_u24 v{t1}, 1280, v{t1}")
        a(f"v_lshl_add_u32 v{t1}, v{t2}, 4, v{t1}")
        a(f"v_add_u32 v{V_WOFF+jj}, s{T}, v{t1}")
    a(f"v_lshrrev_b32 v{V_T+1}, 2, v{V_R}")
    a(f"v_lshl_add_u32 v{V_T+1}, v{V_G}, 2, v{V_T+1}")
    a(f"v_mul_u32_u24 v{V_T+1}, 160, v{V_T+1}")
    a(f"v_and_b32 v{V_T+2}, 3, v{V_R}")
    a(f"v_lshl_add_u32 v{V_WRD0}, v{V_T+2}, 3, v{V_T+1}")
    a(f"s_lshl_b32 s{T}, s{S_W}, 12")
    a(f"s_add_u32 s{T}, s{T}, 20480")
    a(f"v_add_u32 v{V_ARD0}, s{T}, v{V_O16}")
    a(f"s_lshl_b32 s{T+1}, s{S_R16}, 4")
    a(f"v_add_u32 v{V_T+1}, s{T+1}, v{V_R}")
    a(f"v_mul_u32_u24 v{V_T+1}, 1280, v{V_T+1}")
    a(f"v_lshl_add_u32 v{V_T+1}, v{V_G}, 3, v{V_T+1}")
    a(f"s_mul_i32 s{T+1}, s{S_CB}, 160")
    a(f"v_add_u32 v{V_OADDR}, s{T+1}, v{V_T+1}")
    a(f"s_mul_i32 s{S_SW}, s{S_W}, 40960")
    a(f"s_mul_i32 s{S_SA}, s{S_R16}, {54*1024}")
    a(f"s_add_u32 s{S_SA}, s{S_SA}, {HF_OFF}")
    a(f"s_mov_b32 s{S_PF}, 0")
    a(f"s_mov_b32 s{S_PSLOT}, 0")
    a("s_waitcnt lgkmcnt(0)")
    srd(a, S_WSRD, P_W2, P_W2+1, 1728*1280)
    srd(a, S_ASRD, P_WS, P_WS+1, WS_SIZE)
    srd(a, S_XSRD, P_X, P_X+1, 2048*1280)
    srd(a, S_OSRD, P_OUT, P_OUT+1, 2048*1280)
    WS_ = f"s[{S_WSRD}:{S_WSRD+3}]"; AS_ = f"s[{S_ASRD}:{S_ASRD+3}]"
    cnt = [0]
    def prefetch():
        k = cnt[0]; cnt[0] += 1
        a(f"s_cmp_lg_u32 s{S_PF}, 14")
        a(f"s_cbranch_scc1 K3_PF{k}")
        a(f"s_mov_b32 s{S_WSRD}, s{P_WO}")
        a(f"s_and_b32 s{S_WSRD+1}, s{P_WO+1}, 0xffff")
        a(f"s_mov_b32 s{S_WSRD+2}, {640*1280}")
        a(f"s_mul_i32 s{S_SW}, s{S_W}, 40960")
        a(f"s_mul_i32 s{S_SA}, s{S_R16}, {20*1024}")
        a(f"s_add_u32 s{S_SA}, s{S_SA}, {OF_OFF}")
        a.label(f"K3_PF{k}")
        a(f"s_mul_i32 s{T}, s{S_W}, 5120")
        a(f"s_add_u32 s{T}, s{T}, s{S_PSLOT}")
        for jj in range(5):
            a(f"s_add_u32 m0, s{T}, {jj*1024}")
            a("s_nop 0")
            a(f"buffer_load_dwordx4 v{V_WOFF+jj}, {WS_}, s{S_SW} offen lds")
        a(f"s_lshl_b32 s{T}, s{S_W}, 12")
        a(f"s_add_u32 s{T}, s{T}, s{S_PSLOT}")
        a(f"s_add_u32 m0, s{T}, 20480")
        a("s_nop 0")
        for sub in range(4):
            a(f"buffer_load_dwordx4 v{V_O16}, {AS_}, s{S_SA} offen offset:{sub*1024} lds")
        a(f"s_add_u32 s{S_SW}, s{S_SW}, {4*40960}")
        a(f"s_add_u32 s{S_SA}, s{S_SA}, 4096")
        a(f"s_add_u32 s{S_PF}, s{S_PF}, 1")
        a(f"s_add_u32 s{S_PSLOT}, s{S_PSLOT}, {STAGE}")
        a(f"s_cmp_eq_u32 s{S_PSLOT}, {NS*STAGE}")
        a(f"s_cselect_b32 s{S_PSLOT}, 0, s{S_PSLOT}")
    for gi in range(5):
        a(f"buffer_load_dwordx2 {vr(V_X+2*gi,2)}, v{V_OADDR}, s[{S_XSRD}:{S_XSRD+3}], 0 offen offset:{gi*32}")
    for st in range(NS-1):
        prefetch()
    for i in range(20): a(f"v_mov_b32 v{V_ACC+i}, 0")
    a(f"s_mov_b32 s{S_I}, 0")
    a(f"s_mov_b32 s{S_SLOT}, 0")
    def reads(sub, buf):
        r = [f"ds_read_b128 {vr(V_AF+4*buf,4)}, v{V_ARD} offset:{sub*1024}"]
        for gi in range(5):
            for hf in range(2):
                r.append(f"ds_read_b64_tr_b16 {vr(V_WF+20*buf+4*gi+2*hf,2)}, v{V_WRD} offset:{sub*5120 + gi*32 + hf*2560}")
        return r
    def mfmas(buf):
        return [f"v_mfma_f32_16x16x32_bf16 {vr(V_ACC+4*gi,4)}, {vr(V_WF+20*buf+4*gi,4)}, {vr(V_AF+4*buf,4)}, {vr(V_ACC+4*gi,4)}" for gi in range(5)]
    a(".p2align 6")
    a.label("K3_LOOP")
    a(f"s_waitcnt vmcnt({9*(NS-2)})")
    a("s_barrier")
    a(f"v_add_u32 v{V_WRD}, s{S_SLOT}, v{V_WRD0}")
    a(f"v_add_u32 v{V_ARD}, s{S_SLOT}, v{V_ARD0}")
    for r in reads(0, 0): a(r)
    prefetch()
    a(f"s_cmp_lg_u32 s{S_I}, 14")
    a("s_cbranch_scc1 K3_NOSW")
    for i in range(20):
        a(f"v_mov_b32 v{V_Y+i}, v{V_ACC+i}")
        a(f"v_mov_b32 v{V_ACC+i}, 0")
    a.label("K3_NOSW")
    for sub in range(4):
        buf = sub & 1
        a("s_waitcnt lgkmcnt(0)")
        nx = reads(sub+1, buf ^ 1) if sub < 3 else []
        mm = mfmas(buf)
        for gi in range(5):
            a(mm[gi])
            for r in nx[2*gi + (1 if gi else 0): 2*gi + 3] if gi == 0 else nx[2*gi+1: 2*gi+3]:
                a(r)
        if sub == 1:
            a(f"s_cmp_eq_u32 s{S_I}, 13")
            a("s_cbranch_scc1 K3_SKIP")
    a.label("K3_SKIP")
    a("s_waitcnt lgkmcnt(0)")
    a(f"s_add_u32 s{S_SLOT}, s{S_SLOT}, {STAGE}")
    a(f"s_cmp_eq_u32 s{S_SLOT}, {NS*STAGE}")
    a(f"s_cselect_b32 s{S_SLOT}, 0, s{S_SLOT}")
    a(f"s_add_u32 s{S_I}, s{S_I}, 1")
    a(f"s_cmp_lt_u32 s{S_I}, 19")
    a("s_cbranch_scc1 K3_LOOP")
    a("s_waitcnt vmcnt(0)")
    a.nop(8)
    for gi in range(5):
        y = V_Y + 4*gi; s_ = V_ACC + 4*gi; x = V_X + 2*gi; t = V_T
        for j in range(4):
            a(f"v_mul_f32 v{t+j}, {f2h(-LOG2E)}, v{y+j}")
        for j in range(4):
            a(f"v_exp_f32 v{t+j}, v{t+j}")
        a.nop(1)
        for j in range(4):
            a(f"v_add_f32 v{t+j}, 1.0, v{t+j}")
        for j in range(4):
            a(f"v_rcp_f32 v{t+j}, v{t+j}")
        a.nop(1)
        for j in range(4):
            a(f"v_mul_f32 v{t+j}, v{t+j}, v{y+j}")
        a(f"v_lshlrev_b32 v{t+4}, 16, v{x}")
        a(f"v_and_b32 v{t+5}, 0xffff0000, v{x}")
        a(f"v_lshlrev_b32 v{t+6}, 16, v{x+1}")
        a(f"v_and_b32 v{t+7}, 0xffff0000, v{x+1}")
        for j in range(4):
            a(f"v_fmac_f32 v{t+4+j}, v{t+j}, v{s_+j}")
        a(f"v_cvt_pk_bf16_f32 v{x}, v{t+4}, v{t+5}")
        a(f"v_cvt_pk_bf16_f32 v{x+1}, v{t+6}, v{t+7}")
        a(f"buffer_store_dwordx2 {vr(x,2)}, v{V_OADDR}, s[{S_OSRD}:{S_OSRD+3}], 0 offen offset:{gi*32}")
    a("s_waitcnt vmcnt(0)")
    a.label("K3_END")
    a("s_endpgm")
    return kernel_desc(NAME, NV)
```

```python
import sys, importlib
from asmlib import *
import k1, k2, k3

HEADER = """; recurrent_scan__grouped_kv_mqa__dense_activation_relu__prompt  (gfx950, hand-written via own generator)
"""
def build(mods):
    a = Asm()
    descs = []
    hdr = HEADER
    for m in mods:
        hdr += f"; @launch kernel={m.NAME} grid=(256,1,1) block=(256,1,1) lds={m.LDS}\n"
    body = Asm()
    body('.amdgcn_target "amdgcn-amd-amdhsa--gfx950"')
    for m in mods:
        descs.append(m.gen(body))
    txt = hdr + body.text() + '.section .rodata,"a"\n'
    for d in descs:
        txt += ".p2align 6\n" + d
    return txt

if __name__ == "__main__":
    if "--prof" in sys.argv:
        sys.argv.remove("--prof"); set_profile(True)
    if "--dbg" in sys.argv:
        sys.argv.remove("--dbg"); set_profile(True); set_dbg(True)
    out = sys.argv[1] if len(sys.argv) > 1 else "recurrent_scan__grouped_kv_mqa__dense_activation_relu__prompt.s"
    open(out, "w").write(build([k1, k2, k3]))
    print("wrote", out)
```

```python
class Asm:
    def __init__(self):
        self.L = []
    def __call__(self, s):
        for line in s.strip("\n").split("\n"):
            line = line.strip()
            if not line:
                continue
            if line.endswith(":") or line.startswith("."):
                self.L.append(line)
            else:
                self.L.append("    " + line)
    def label(self, l):
        self.L.append(l + ":")
    def comment(self, c):
        self.L.append("    ; " + c)
    def nop(self, n):
        while n > 0:
            k = min(n, 16)
            self.L.append(f"    s_nop {k-1}")
            n -= k
    def text(self):
        return "\n".join(self.L) + "\n"

def vr(base, n=1):
    return f"v{base}" if n == 1 else f"v[{base}:{base+n-1}]"
def ar(base, n=1):
    return f"a{base}" if n == 1 else f"a[{base}:{base+n-1}]"
def sr(base, n=1):
    return f"s{base}" if n == 1 else f"s[{base}:{base+n-1}]"

def kernel_header(a, name):
    a(".text")
    a(f".globl {name}")
    a(".p2align 8")
    a(f".type {name},@function")
    a.label(name)

def kernel_desc(name, nvgpr, nagpr=0, nsgpr=102):
    accum = (nvgpr + 3) // 4 * 4
    total = accum + nagpr if nagpr else nvgpr
    return f""".amdhsa_kernel {name}
  .amdhsa_next_free_vgpr {total}
  .amdhsa_next_free_sgpr {nsgpr}
  .amdhsa_accum_offset {accum}
  .amdhsa_group_segment_fixed_size 0
  .amdhsa_kernarg_size 88
  .amdhsa_user_sgpr_count 2
  .amdhsa_user_sgpr_kernarg_segment_ptr 1
  .amdhsa_system_sgpr_workgroup_id_x 1
  .amdhsa_float_denorm_mode_32 3
.end_amdhsa_kernel
"""

def srd(a, s, lo, hi, size):
    a(f"s_mov_b32 s{s}, s{lo}")
    a(f"s_and_b32 s{s+1}, s{hi}, 0xffff")
    a(f"s_mov_b32 s{s+2}, {size}")
    a(f"s_mov_b32 s{s+3}, 0x00020000")

QF_OFF = 0x0
KV_OFF = 0x280000
KV_TILE = 3584
ST_OFF = 0x2B8000
HF_OFF = 0x2C0000
OF_OFF = 0x980000
WS_SIZE = 0xC00000
OOB = 0x7FFF0000

PROFILE = False
PROF_OFF = 0x1000000
S_STAMP = 68
class Prof:
    def __init__(self, a, kidx):
        self.a = a; self.k = kidx; self.n = 0
    def stamp(self, real=False):
        if not PROFILE_ON(): return
        a = self.a
        assert self.n < 14
        a(f"{'s_memrealtime' if real else 's_memtime'} s[{S_STAMP+2*self.n}:{S_STAMP+2*self.n+1}]")
        a("s_waitcnt lgkmcnt(0)")
        self.n += 1
    def dump(self, ws_lo, ws_hi, wave_sgpr, vtmp):
        if not PROFILE_ON(): return
        a = self.a
        a(f"s_mov_b32 s96, s{ws_lo}")
        a(f"s_and_b32 s97, s{ws_hi}, 0xffff")
        a(f"s_mov_b32 s98, 0x2000000")
        a(f"s_mov_b32 s99, 0x00020000")
        a(f"s_lshl_b32 s100, s2, 2")
        a(f"s_add_u32 s100, s100, s{wave_sgpr}")
        a(f"s_lshl_b32 s100, s100, 6")
        a(f"s_add_u32 s100, s100, {PROF_OFF + self.k*0x20000}")
        for i in range(self.n):
            a(f"v_mov_b32 v{vtmp}, s{S_STAMP+2*i}")
            a(f"v_mov_b32 v{vtmp+1}, 0")
            a(f"buffer_store_dword v{vtmp}, v{vtmp+1}, s[96:99], s100 offen offset:{4*i}")
            a("s_nop 1")
        a("s_waitcnt vmcnt(0)")
_prof = [False]
def PROFILE_ON(): return _prof[0]
def set_profile(x): _prof[0] = x
```

```python
from asmlib import *
import struct
def f2h(x): return hex(struct.unpack('<I', struct.pack('<f', x))[0])

NAME = "k1_proj_kernel"
LDS = 163840
X_BYTES = 81920
RING = 20480
QSCALE = 0.22360679774997896 * 1.4426950408889634

S_XSRD = 4; S_WSRD = 8; S_OSRD = 12
S_RB = 16; S_CB = 17; S_W = 18; S_SLOT = 19; S_STEP = 20; S_SOFF = 21; S_RING = 22
S_T0 = 24
S_ONES = 40; S_LO1 = 41; S_HI1 = 42
S_KARG = 44
P_X, P_WQ, P_WK, P_WV, P_WO, P_BX, P_W1, P_W2, P_OUT, P_DBG, P_WS = [S_KARG + 2*i for i in range(11)]
V_LANE = 1; V_R = 2; V_G = 3
V_WOFF = 4
V_WRD = 9
V_X = 10
V_RSTD = 14
V_T = 18
V_WF = 32
V_XF = 72
V_RAW = 32
V_ACC = 112
V_T2 = 192
NV = 224

def acc(gi, rt): return V_ACC + (gi * 4 + rt) * 4

def load_kernargs(a):
    a(f"s_load_dwordx16 s[{S_KARG}:{S_KARG+15}], s[0:1], 0")
    a(f"s_load_dwordx4 s[{S_KARG+16}:{S_KARG+19}], s[0:1], 64")
    a(f"s_load_dwordx2 s[{S_KARG+20}:{S_KARG+21}], s[0:1], 80")

def gen(a):
    kernel_header(a, NAME)
    a("s_cmp_ge_u32 s2, 256")
    a("s_cbranch_scc1 K1_END")
    P = Prof(a, 0)
    P.stamp(True); P.stamp()
    load_kernargs(a)
    a(f"v_and_b32 v{V_LANE}, 63, v0")
    a(f"v_lshrrev_b32 v{V_T}, 6, v0")
    a(f"v_and_b32 v{V_R}, 15, v0")
    a(f"v_readfirstlane_b32 s{S_W}, v{V_T}")
    a(f"v_bfe_u32 v{V_G}, v0, 4, 2")
    a(f"s_and_b32 s{S_T0}, s2, 7")
    a(f"s_lshr_b32 s{S_T0+1}, s2, 3")
    a(f"s_lshr_b32 s{S_T0+2}, s{S_T0}, 2")
    a(f"s_lshl_b32 s{S_T0+2}, s{S_T0+2}, 4")
    a(f"s_lshr_b32 s{S_T0+3}, s{S_T0+1}, 1")
    a(f"s_add_u32 s{S_RB}, s{S_T0+2}, s{S_T0+3}")
    a(f"s_and_b32 s{S_T0+2}, s{S_T0}, 3")
    a(f"s_lshl_b32 s{S_T0+2}, s{S_T0+2}, 1")
    a(f"s_and_b32 s{S_T0+3}, s{S_T0+1}, 1")
    a(f"s_add_u32 s{S_CB}, s{S_T0+2}, s{S_T0+3}")
    a(f"s_lshl_b32 s{S_SLOT}, s{S_CB}, 2")
    a(f"s_add_u32 s{S_SLOT}, s{S_SLOT}, s{S_W}")
    a(f"s_lshl_b32 s{S_T0}, s{S_RB}, 6")
    a(f"s_lshl_b32 s{S_T0+1}, s{S_W}, 4")
    a(f"s_add_u32 s{S_T0}, s{S_T0}, s{S_T0+1}")
    a(f"v_add_u32 v{V_T}, s{S_T0}, v{V_R}")
    a(f"v_mul_u32_u24 v{V_T}, 1280, v{V_T}")
    a(f"v_lshl_add_u32 v{V_T}, v{V_G}, 4, v{V_T}")
    a("s_waitcnt lgkmcnt(0)")
    srd(a, S_XSRD, P_X, P_X+1, 2048*1280)
    for s in range(20):
        a(f"buffer_load_dwordx4 {vr(V_RAW+4*s,4)}, v{V_T}, s[{S_XSRD}:{S_XSRD+3}], 0 offen offset:{64*s}")
    T = S_T0
    a(f"s_cmp_lt_u32 s{S_SLOT}, 8")
    a("s_cbranch_scc1 K1_SRC_Q")
    a(f"s_cmp_lt_u32 s{S_SLOT}, 30")
    a("s_cbranch_scc1 K1_SRC_H")
    a(f"s_cmp_eq_u32 s{S_SLOT}, 30")
    a(f"s_cselect_b32 s{T}, s{P_WK}, s{P_WV}")
    a(f"s_cselect_b32 s{T+1}, s{P_WK+1}, s{P_WV+1}")
    a(f"s_mov_b32 s{T+2}, 25600")
    a(f"s_mov_b32 s{T+3}, 40")
    a(f"s_mov_b32 s{T+4}, 0")
    a(f"s_mov_b32 s{T+5}, 2")
    a("s_branch K1_SRC_DONE")
    a.label("K1_SRC_Q")
    a(f"s_mov_b32 s{T}, s{P_WQ}")
    a(f"s_mov_b32 s{T+1}, s{P_WQ+1}")
    a(f"s_mov_b32 s{T+2}, {640*1280}")
    a(f"s_mov_b32 s{T+3}, 1280")
    a(f"s_mul_i32 s{T+4}, s{S_SLOT}, 160")
    a(f"s_mov_b32 s{T+5}, 9")
    a("s_branch K1_SRC_DONE")
    a.label("K1_SRC_H")
    a(f"s_mov_b32 s{T}, s{P_W1}")
    a(f"s_mov_b32 s{T+1}, s{P_W1+1}")
    a(f"s_mov_b32 s{T+2}, {640*3456}")
    a(f"s_mov_b32 s{T+3}, 3456")
    a(f"s_sub_u32 s{T+4}, s{S_SLOT}, 8")
    a(f"s_mul_i32 s{T+4}, s{T+4}, 160")
    a(f"s_mov_b32 s{T+5}, 9")
    a.label("K1_SRC_DONE")
    a(f"s_mov_b32 s{S_WSRD}, s{T}")
    a(f"s_and_b32 s{S_WSRD+1}, s{T+1}, 0xffff")
    a(f"s_mov_b32 s{S_WSRD+2}, s{T+2}")
    a(f"s_mov_b32 s{S_WSRD+3}, 0x00020000")
    a(f"s_lshl_b32 s{S_STEP}, s{T+3}, 5")
    for jj in range(5):
        t0, t1, t2, t3 = V_T+1, V_T+2, V_T+3, V_T+4
        a(f"v_add_u32 v{t0}, {64*jj}, v{V_LANE}")
        a(f"v_mul_u32_u24 v{t1}, 6554, v{t0}")
        a(f"v_lshrrev_b32 v{t1}, 16, v{t1}")
        a(f"v_mul_u32_u24 v{t2}, 10, v{t1}")
        a(f"v_sub_u32 v{t2}, v{t0}, v{t2}")
        a(f"v_min_u32 v{t2}, s{T+5}, v{t2}")
        a(f"v_bfe_u32 v{t3}, v{t1}, 2, 2")
        a(f"v_lshlrev_b32 v{t3}, 3, v{t3}")
        a(f"v_and_b32 v{t0}, 3, v{t1}")
        a(f"v_add_u32 v{t3}, v{t3}, v{t0}")
        a(f"v_lshrrev_b32 v{t1}, 4, v{t1}")
        a(f"v_lshl_add_u32 v{t3}, v{t1}, 2, v{t3}")
        a(f"v_mul_lo_u32 v{t3}, v{t3}, s{T+3}")
        a(f"v_lshl_add_u32 v{t3}, v{t2}, 4, v{t3}")
        a(f"v_add_u32 v{V_WOFF+jj}, s{T+4}, v{t3}")
    a(f"s_mul_i32 s{S_RING}, s{S_W}, {RING}")
    a(f"s_add_u32 s{S_RING}, s{S_RING}, {X_BYTES}")
    a(f"s_mov_b32 s{S_SOFF}, 0")
    def dma(slot):
        for jj in range(5):
            a(f"s_add_u32 m0, s{S_RING}, {slot*5120 + jj*1024}")
            a("s_nop 0")
            a(f"buffer_load_dwordx4 v{V_WOFF+jj}, s[{S_WSRD}:{S_WSRD+3}], s{S_SOFF} offen lds")
        a(f"s_add_u32 s{S_SOFF}, s{S_SOFF}, s{S_STEP}")
    for st in range(3):
        dma(st)
    a(f"v_lshrrev_b32 v{V_T+1}, 2, v{V_R}")
    a(f"v_lshl_add_u32 v{V_T+1}, v{V_G}, 2, v{V_T+1}")
    a(f"v_mul_u32_u24 v{V_T+1}, 160, v{V_T+1}")
    a(f"v_and_b32 v{V_T+2}, 3, v{V_R}")
    a(f"v_lshl_add_u32 v{V_T+1}, v{V_T+2}, 3, v{V_T+1}")
    a(f"v_add_u32 v{V_WRD}, s{S_RING}, v{V_T+1}")
    for i in range(4):
        a(f"v_add_u32 v{V_T+1}, {4*i}, v{V_G}")
        a(f"v_xor_b32 v{V_T+1}, v{V_T+1}, v{V_R}")
        a(f"v_lshlrev_b32 v{V_T+1}, 4, v{V_T+1}")
        a(f"v_mul_u32_u24 v{V_T+2}, 1280, v{V_R}")
        a(f"v_add_u32 v{V_X+i}, v{V_T+1}, v{V_T+2}")
    for i in range(80):
        a(f"v_mov_b32 v{V_ACC+i}, 0")
    a(f"s_mov_b32 s{S_ONES}, 0x3f803f80")
    a(f"s_mov_b32 s{S_LO1}, 0x00003f80")
    a(f"s_mov_b32 s{S_HI1}, 0x3f800000")
    srd(a, S_OSRD, P_WS, P_WS+1, WS_SIZE)
    st = V_T2
    for i in range(8):
        a(f"v_mov_b32 v{st+i}, 0")
    P.stamp()
    a("s_waitcnt vmcnt(15)")
    P.stamp()
    for i in range(80):
        r = V_RAW + i
        a(f"v_dot2_f32_bf16 v{st + (i&3)}, v{r}, s{S_ONES}, v{st + (i&3)}")
        a(f"v_dot2_f32_bf16 v{st + 4 + (i&3)}, v{r}, v{r}, v{st + 4 + (i&3)}")
    a.nop(3)
    a(f"v_add_f32 v{st}, v{st}, v{st+1}")
    a(f"v_add_f32 v{st+2}, v{st+2}, v{st+3}")
    a(f"v_add_f32 v{st+4}, v{st+4}, v{st+5}")
    a(f"v_add_f32 v{st+6}, v{st+6}, v{st+7}")
    a(f"v_add_f32 v{st}, v{st}, v{st+2}")
    a(f"v_add_f32 v{st+4}, v{st+4}, v{st+6}")
    def xreduce(v, t, op="v_add_f32"):
        a(f"v_mov_b32 v{t}, v{v}")
        a.nop(2)
        a(f"v_permlane16_swap_b32 v{t}, v{v}")
        a.nop(1)
        a(f"{op} v{v}, v{v}, v{t}")
        a(f"v_mov_b32 v{t}, v{v}")
        a.nop(2)
        a(f"v_permlane32_swap_b32 v{t}, v{v}")
        a.nop(1)
        a(f"{op} v{v}, v{v}, v{t}")
    xreduce(st, st+1)
    xreduce(st+4, st+5)
    a(f"v_mul_f32 v{st}, {f2h(1.0/640)}, v{st}")
    a(f"v_mul_f32 v{st+4}, {f2h(1.0/640)}, v{st+4}")
    a(f"v_fma_f32 v{st+4}, -v{st}, v{st}, v{st+4}")
    a(f"v_max_f32 v{st+4}, 0, v{st+4}")
    a(f"v_add_f32 v{st+4}, 0x3727c5ac, v{st+4}")
    a(f"v_rsq_f32 v{st+5}, v{st+4}")
    a(f"v_sub_f32 v{st+2}, 0, v{st}")
    for i in range(4):
        a(f"v_mov_b32 v{V_T+1+i}, v{V_X+i}")
    a(f"s_mul_i32 s{S_T0+8}, s{S_W}, 20480")
    for i in range(4):
        a(f"v_add_u32 v{V_T+1+i}, s{S_T0+8}, v{V_T+1+i}")
    tmp = st + 8
    for s in range(20):
        for j in range(4):
            r = V_RAW + 4*s + j
            a(f"v_dot2_f32_bf16 v{tmp+2*j}, v{r}, s{S_LO1}, v{st+2}")
            a(f"v_dot2_f32_bf16 v{tmp+2*j+1}, v{r}, s{S_HI1}, v{st+2}")
        a.nop(1)
        for j in range(4):
            r = V_RAW + 4*s + j
            if j == 3: pass
            a(f"v_cvt_pk_bf16_f32 v{r}, v{tmp+2*j}, v{tmp+2*j+1}")
        a(f"ds_write_b128 v{V_T+1+(s&3)}, {vr(V_RAW+4*s,4)} offset:{(s>>2)*256}")
    a(f"s_lshl_b32 s{S_T0+8}, s{S_W}, 6")
    a(f"s_add_u32 s{S_T0+8}, s{S_T0+8}, {X_BYTES + 3*5120}")
    a(f"v_lshl_add_u32 v{V_T+5}, v{V_R}, 2, s{S_T0+8}")
    for w2 in range(4):
        a(f"ds_write_b32 v{V_T+5}, v{st+5} offset:{w2*RING}")
    a("s_waitcnt lgkmcnt(0)")
    P.stamp()
    a("s_barrier")
    P.stamp()
    a(f"s_add_u32 s{S_T0+8}, s{S_RING}, {3*5120}")
    a(f"v_lshl_add_u32 v{V_T+5}, v{V_R}, 2, s{S_T0+8}")
    for rt in range(4):
        a(f"ds_read_b32 v{V_RSTD+rt}, v{V_T+5} offset:{rt*64}")
    def reads(s4, buf, it_off):
        r = []
        for rt in range(4):
            r.append(f"ds_read_b128 {vr(V_XF+16*buf+4*rt,4)}, v{V_X+s4} offset:{rt*20480 + it_off}")
        for gi in range(5):
            for hf in range(2):
                r.append(f"ds_read_b64_tr_b16 {vr(V_WF+20*buf+4*gi+2*hf,2)}, v{V_WRD} offset:{s4*5120 + gi*32 + hf*2560}")
        return r
    a("s_waitcnt vmcnt(10) lgkmcnt(0)")
    for r in reads(0, 0, 0): a(r)
    dma(3)
    a(f"s_mov_b32 s{S_T0+9}, 5")
    a(".p2align 6")
    a.label("K1_LOOP")
    for s4 in range(4):
        buf = s4 & 1
        a("s_waitcnt vmcnt(10) lgkmcnt(0)")
        nxt = reads((s4+1) & 3, buf ^ 1, 256 if s4 == 3 else 0)
        dm = []
        for jj in range(5):
            dm.append([f"s_add_u32 m0, s{S_RING}, {s4*5120 + jj*1024}", None,
                       f"buffer_load_dwordx4 v{V_WOFF+jj}, s[{S_WSRD}:{S_WSRD+3}], s{S_SOFF} offen lds"])
        n = 0
        for gi in range(5):
            for rt in range(4):
                if n >= 10 and n % 2 == 0 and (n-10)//2 < 5:
                    a(dm[(n-10)//2][0])
                a(f"v_mfma_f32_16x16x32_bf16 {vr(acc(gi,rt),4)}, {vr(V_WF+20*buf+4*gi,4)}, {vr(V_XF+16*buf+4*rt,4)}, {vr(acc(gi,rt),4)}")
                if n >= 10 and n % 2 == 0 and (n-10)//2 < 5:
                    a(dm[(n-10)//2][2])
                if n < 14:
                    a(nxt[n])
                n += 1
        a(f"s_add_u32 s{S_SOFF}, s{S_SOFF}, s{S_STEP}")
    for i in range(4):
        a(f"v_add_u32 v{V_X+i}, 256, v{V_X+i}")
    a(f"s_sub_u32 s{S_T0+9}, s{S_T0+9}, 1")
    a(f"s_cmp_lg_u32 s{S_T0+9}, 0")
    a("s_cbranch_scc1 K1_LOOP")
    a("s_waitcnt vmcnt(0) lgkmcnt(0)")
    P.stamp()
    a.nop(8)
    a(f"s_cmp_lt_u32 s{S_SLOT}, 8")
    a("s_cbranch_scc1 K1_EPI_Q")
    a(f"s_cmp_lt_u32 s{S_SLOT}, 30")
    a("s_cbranch_scc1 K1_EPI_H")
    a(f"s_cmp_eq_u32 s{S_SLOT}, 30")
    a("s_cbranch_scc1 K1_EPI_K")
    a("s_branch K1_EPI_V")
    O = f"s[{S_OSRD}:{S_OSRD+3}]"
    T = S_T0
    a.label("K1_EPI_H")
    a(f"s_sub_u32 s{T}, s{S_SLOT}, 8")
    a(f"s_mul_i32 s{T}, s{T}, 5")
    a(f"s_lshl_b32 s{T+1}, s{S_RB}, 2")
    a(f"s_mul_i32 s{T+1}, s{T+1}, {54*1024}")
    a(f"s_add_u32 s{T+1}, s{T+1}, {HF_OFF}")
    a(f"v_lshlrev_b32 v{V_T}, 4, v{V_LANE}")
    for gi in range(5):
        a(f"s_add_u32 s{T+2}, s{T}, {gi}")
        if gi >= 3:
            a(f"s_cmp_ge_u32 s{T+2}, 108")
            a("s_cbranch_scc1 K1_END_WAIT")
        a(f"s_lshr_b32 s{T+3}, s{T+2}, 1")
        a(f"s_lshl_b32 s{T+3}, s{T+3}, 10")
        a(f"s_and_b32 s{T+4}, s{T+2}, 1")
        a(f"s_lshl_b32 s{T+4}, s{T+4}, 3")
        a(f"s_add_u32 s{T+3}, s{T+3}, s{T+4}")
        a(f"s_add_u32 s{T+3}, s{T+3}, s{T+1}")
        for rt in range(4):
            c = acc(gi, rt)
            for j in range(4):
                a(f"v_mul_f32 v{c+j}, v{c+j}, v{V_RSTD+rt}")
            a(f"v_cvt_pk_bf16_f32 v{c}, v{c}, v{c+1}")
            a(f"v_cvt_pk_bf16_f32 v{c+1}, v{c+2}, v{c+3}")
            a(f"v_pk_max_i16 v{c}, v{c}, 0")
            a(f"v_pk_max_i16 v{c+1}, v{c+1}, 0")
            a(f"buffer_store_dwordx2 {vr(c,2)}, v{V_T}, {O}, s{T+3} offen")
            if rt < 3:
                a(f"s_add_u32 s{T+3}, s{T+3}, {54*1024}")
    a("s_branch K1_END_WAIT")
    a.label("K1_EPI_Q")
    a(f"s_lshl_b32 s{T}, s{S_RB}, 6")
    a(f"s_lshl_b32 s{T+1}, s{S_SLOT}, 2")
    a(f"s_add_u32 s{T}, s{T}, s{T+1}")
    a(f"s_mul_i32 s{T}, s{T}, 1280")
    if QF_OFF: a(f"s_add_u32 s{T}, s{T}, {QF_OFF}")
    a(f"s_add_u32 s{T+1}, s{T}, {32*1280}")
    for rt in range(4):
        a(f"v_mul_f32 v{V_RSTD+rt}, {f2h(QSCALE)}, v{V_RSTD+rt}")
    def piece_addr(q4reg, dst, dmul, hl_stride, tailoff):
        t0, t1, t2 = V_T+1, V_T+2, V_T+3
        a(f"v_mul_u32_u24 v{t0}, 52, v{q4reg}")
        a(f"v_lshrrev_b32 v{t0}, 8, v{t0}")
        a(f"v_mul_u32_u24 v{t1}, 5, v{t0}")
        a(f"v_sub_u32 v{t1}, v{q4reg}, v{t1}")
        a(f"v_mul_u32_u24 v{t0}, {hl_stride}, v{t0}")
        a(f"v_lshrrev_b32 v{t2}, 1, v{t1}")
        a(f"v_lshlrev_b32 v{t2}, 9, v{t2}")
        a(f"v_add_u32 v{t0}, v{t0}, v{t2}")
        a(f"v_and_b32 v{t2}, 1, v{t1}")
        a(f"v_lshl_add_u32 v{t0}, v{t2}, 3, v{t0}")
        a(f"v_cmp_eq_u32 vcc, 4, v{t1}")
        a.nop(2)
        a(f"v_cndmask_b32 v{t2}, 4, 3, vcc")
        a.nop(1)
        a(f"v_lshlrev_b32 v{t1}, v{t2}, v{V_R}")
        a(f"v_add_u32 v{dst}, v{t0}, v{t1}")
        a(f"v_lshlrev_b32 v{dmul}, v{t2}, v{V_T+6}")
    a(f"v_mov_b32 v{V_T+6}, 16")
    for gi in range(5):
        a(f"v_add_u32 v{V_T+4}, {4*gi}, v{V_G}")
        piece_addr(V_T+4, V_T2+2*gi, V_T2+2*gi+1, 1280, 1024)
        a(f"v_add_u32 v{V_T2+2*gi+1}, v{V_T2+2*gi}, v{V_T2+2*gi+1}")
    for gi in range(5):
        for rt in range(4):
            c = acc(gi, rt)
            for j in range(4):
                a(f"v_mul_f32 v{c+j}, v{c+j}, v{V_RSTD+rt}")
            a(f"v_cvt_pk_bf16_f32 v{c}, v{c}, v{c+1}")
            a(f"v_cvt_pk_bf16_f32 v{c+1}, v{c+2}, v{c+3}")
            a(f"buffer_store_dwordx2 {vr(c,2)}, v{V_T2+2*gi+(rt&1)}, {O}, s{T+(rt>>1)} offen")
    a("s_branch K1_END_WAIT")
    a.label("K1_EPI_K")
    a(f"s_mul_i32 s{T}, s{S_RB}, {2*KV_TILE}")
    a(f"s_add_u32 s{T}, s{T}, {KV_OFF}")
    a(f"s_add_u32 s{T+1}, s{T}, {KV_TILE}")
    a(f"v_mov_b32 v{V_T+6}, 16")
    for gi in range(2):
        a(f"v_add_u32 v{V_T+4}, {4*gi}, v{V_G}")
        piece_addr(V_T+4, V_T2+2*gi, V_T2+2*gi+1, 0, 1024)
        a(f"v_add_u32 v{V_T2+2*gi+1}, v{V_T2+2*gi}, v{V_T2+2*gi+1}")
    a(f"v_cmp_eq_u32 vcc, 0, v{V_G}")
    a(f"v_mov_b32 v{V_T+7}, {OOB}")
    a.nop(1)
    a(f"v_cndmask_b32 v{V_T2+2}, v{V_T+7}, v{V_T2+2}, vcc")
    a(f"v_cndmask_b32 v{V_T2+3}, v{V_T+7}, v{V_T2+3}, vcc")
    a(f"v_mov_b32 v{V_T2+8}, 0")
    for rt in range(4):
        nrm = V_T2+9
        for gi in range(2):
            c = acc(gi, rt)
            for j in range(4):
                a(f"v_mul_f32 v{c+j}, v{c+j}, v{V_RSTD+rt}")
        c0, c1 = acc(0, rt), acc(1, rt)
        a(f"v_mul_f32 v{nrm}, v{c0}, v{c0}")
        for j in range(1, 4): a(f"v_fmac_f32 v{nrm}, v{c0+j}, v{c0+j}")
        a(f"v_mul_f32 v{nrm+1}, v{c1}, v{c1}")
        for j in range(1, 4): a(f"v_fmac_f32 v{nrm+1}, v{c1+j}, v{c1+j}")
        a(f"v_cndmask_b32 v{nrm+1}, 0, v{nrm+1}, vcc")
        a(f"v_add_f32 v{nrm}, v{nrm}, v{nrm+1}")
        xreduce(nrm, nrm+1)
        a(f"v_max_f32 v{V_T2+8}, v{V_T2+8}, v{nrm}")
        for gi in range(2):
            c = acc(gi, rt)
            a(f"v_cvt_pk_bf16_f32 v{c}, v{c}, v{c+1}")
            a(f"v_cvt_pk_bf16_f32 v{c+1}, v{c+2}, v{c+3}")
            a(f"buffer_store_dwordx2 {vr(c,2)}, v{V_T2+2*gi+(rt&1)}, {O}, s{T+(rt>>1)} offen")
    a(f"v_lshlrev_b32 v{V_T+1}, 3, v{V_LANE}")
    a(f"v_add_u32 v{V_T+1}, {1024+256}, v{V_T+1}")
    a(f"v_cmp_gt_u32 vcc, 32, v{V_LANE}")
    a(f"v_mov_b32 v{V_T+2}, 0x3f803f80")
    a(f"v_mov_b32 v{V_T+3}, 0x00003f80")
    a(f"v_cndmask_b32 v{V_T+1}, v{V_T+7}, v{V_T+1}, vcc")
    for tt in range(2):
        a(f"buffer_store_dwordx2 {vr(V_T+2,2)}, v{V_T+1}, {O}, s{T+tt} offen")
    def rowmax(v, t):
        for sh in (8, 4, 2, 1):
            a.nop(2)
            a(f"v_max_f32_dpp v{v}, v{v}, v{v} row_ror:{sh} row_mask:0xf bank_mask:0xf")
    rowmax(V_T2+8, V_T2+9)
    a(f"s_lshl_b32 s{T+2}, s{S_RB}, 2")
    a(f"s_add_u32 s{T+2}, s{T+2}, {ST_OFF}")
    a(f"v_cmp_eq_u32 vcc, 0, v{V_LANE}")
    a(f"v_mov_b32 v{V_T+1}, 0")
    a.nop(1)
    a(f"v_cndmask_b32 v{V_T+1}, v{V_T+7}, v{V_T+1}, vcc")
    a(f"buffer_store_dword v{V_T2+8}, v{V_T+1}, {O}, s{T+2} offen")
    a("s_branch K1_END_WAIT")
    a.label("K1_EPI_V")
    a(f"s_mul_i32 s{T}, s{S_RB}, {2*KV_TILE}")
    a(f"s_add_u32 s{T}, s{T}, {KV_OFF + 1536}")
    a(f"v_lshrrev_b32 v{V_T+1}, 3, v{V_R}")
    a(f"v_lshlrev_b32 v{V_T+1}, 9, v{V_T+1}")
    a(f"v_and_b32 v{V_T+2}, 7, v{V_R}")
    a(f"v_lshl_add_u32 v{V_T+1}, v{V_T+2}, 1, v{V_T+1}")
    a(f"v_lshl_add_u32 v{V_T+1}, v{V_G}, 6, v{V_T+1}")
    a(f"v_mov_b32 v{V_T+7}, {OOB}")
    a(f"v_cmp_eq_u32 vcc, 0, v{V_G}")
    a(f"v_add_u32 v{V_T+2}, 256, v{V_T+1}")
    a.nop(1)
    a(f"v_cndmask_b32 v{V_T+2}, v{V_T+7}, v{V_T+2}, vcc")
    a(f"v_mov_b32 v{V_T2+8}, 0")
    for rt in range(4):
        a(f"s_add_u32 s{T+1}, s{T}, {(rt>>1)*KV_TILE + (rt&1)*1024}")
        for gi in range(2):
            c = acc(gi, rt)
            for j in range(4):
                a(f"v_mul_f32 v{c+j}, v{c+j}, v{V_RSTD+rt}")
            if gi == 0:
                a(f"v_max3_f32 v{V_T2+8}, |v{c}|, |v{c+1}|, v{V_T2+8}")
                a(f"v_max3_f32 v{V_T2+8}, |v{c+2}|, |v{c+3}|, v{V_T2+8}")
            else:
                a(f"v_max3_f32 v{V_T2+9}, |v{c}|, |v{c+1}|, |v{c+2}|")
                a(f"v_max_f32 v{V_T2+9}, v{V_T2+9}, |v{c+3}|".replace("v_max_f32", "v_max_f32_e64"))
                a(f"v_cndmask_b32 v{V_T2+9}, 0, v{V_T2+9}, vcc")
                a(f"v_max_f32 v{V_T2+8}, v{V_T2+8}, v{V_T2+9}")
            a(f"v_cvt_pk_bf16_f32 v{c}, v{c}, v{c+1}")
            a(f"v_cvt_pk_bf16_f32 v{c+2}, v{c+2}, v{c+3}")
            ad = V_T+1+gi
            a(f"buffer_store_short v{c}, v{ad}, {O}, s{T+1} offen")
            a(f"buffer_store_short_d16_hi v{c}, v{ad}, {O}, s{T+1} offen offset:16")
            a(f"buffer_store_short v{c+2}, v{ad}, {O}, s{T+1} offen offset:32")
            a(f"buffer_store_short_d16_hi v{c+2}, v{ad}, {O}, s{T+1} offen offset:48")
    a(f"v_cmp_lt_u32 vcc, 11, v{V_LANE}")
    a.nop(2)
    a(f"v_cndmask_b32 v{V_T+3}, 0, 1, vcc")
    a(f"v_mul_u32_u24 v{V_T+4}, 12, v{V_T+3}")
    a(f"v_sub_u32 v{V_T+4}, v{V_LANE}, v{V_T+4}")
    a(f"v_cmp_eq_u32 vcc, 0, v{V_T+4}")
    a(f"v_add_u32 v{V_T+4}, 20, v{V_T+4}")
    a(f"v_lshl_add_u32 v{V_T+4}, v{V_T+3}, 5, v{V_T+4}")
    a(f"v_lshlrev_b32 v{V_T+4}, 4, v{V_T+4}")
    a(f"v_mov_b32 v{V_T+5}, 0x3f803f80")
    a(f"v_cndmask_b32 v{V_T2}, 0, v{V_T+5}, vcc")
    a(f"v_mov_b32 v{V_T2+1}, v{V_T2}")
    a(f"v_mov_b32 v{V_T2+2}, v{V_T2}")
    a(f"v_mov_b32 v{V_T2+3}, v{V_T2}")
    a(f"v_cmp_gt_u32 vcc, 24, v{V_LANE}")
    a.nop(2)
    a(f"v_cndmask_b32 v{V_T+4}, v{V_T+7}, v{V_T+4}, vcc")
    for tt in range(2):
        for t in range(2):
            a(f"s_add_u32 s{T+1}, s{T}, {tt*KV_TILE + t*1024}")
            a(f"buffer_store_dwordx4 {vr(V_T2,4)}, v{V_T+4}, {O}, s{T+1} offen")
    xreduce(V_T2+8, V_T2+9, "v_max_f32")
    rowmax(V_T2+8, V_T2+9)
    a(f"s_lshl_b32 s{T+2}, s{S_RB}, 2")
    a(f"s_add_u32 s{T+2}, s{T+2}, {ST_OFF + 128}")
    a(f"v_cmp_eq_u32 vcc, 0, v{V_LANE}")
    a(f"v_mov_b32 v{V_T+1}, 0")
    a.nop(1)
    a(f"v_cndmask_b32 v{V_T+1}, v{V_T+7}, v{V_T+1}, vcc")
    a(f"buffer_store_dword v{V_T2+8}, v{V_T+1}, {O}, s{T+2} offen")
    a.label("K1_END_WAIT")
    P.stamp()
    a("s_waitcnt vmcnt(0)")
    P.stamp(); P.stamp(True)
    P.dump(P_WS, P_WS+1, S_W, V_T)
    a.label("K1_END")
    a("s_endpgm")
    return kernel_desc(NAME, NV)
```

```python
from asmlib import *
import struct
def f2h(x): return hex(struct.unpack('<I', struct.pack('<f', x))[0])

NAME = "k2_attn_kernel"
LDS = 73728
S_SRD = 4
S_RB = 8; S_HG = 9; S_W = 10; S_KV = 11; S_IT = 12
S_T = 16
S_WS = 32
V_LANE = 1; V_IDX = 2; V_O16 = 3; V_O8 = 4; V_T = 5
V_Q1 = 12; V_Q2 = 44; V_S = (60, 76); V_K = 92; V_V = 104; V_T2 = 120
NV = 128; NA = 128
def Q1(t): return vr(V_Q1 + 4*t, 4)
def Q2(t): return vr(V_Q2 + 2*t, 2)
def K1(b): return vr(V_K + 6*b, 4)
def K2(b): return vr(V_K + 6*b + 4, 2)
def VF(b, t): return vr(V_V + 8*b + 4*t, 4)
def O(t): return ar(16*t, 16)
SRD = f"s[{S_SRD}:{S_SRD+3}]"

def kv_loads(b, part):
    if part == "k":
        return [f"buffer_load_dwordx4 {K1(b)}, v{V_O16}, {SRD}, s{S_KV} offen",
                f"buffer_load_dwordx2 {K2(b)}, v{V_O8}, {SRD}, s{S_KV} offen offset:1024"]
    return [f"buffer_load_dwordx4 {VF(b,0)}, v{V_O16}, {SRD}, s{S_KV} offen offset:1536",
            f"buffer_load_dwordx4 {VF(b,1)}, v{V_O16}, {SRD}, s{S_KV} offen offset:2560"]

def qk(a, sbuf, t, kb):
    S = vr(V_S[sbuf], 16)
    return [f"v_mfma_f32_32x32x16_bf16 {S}, {K1(kb)}, {Q1(t)}, 0",
            f"v_mfma_f32_32x32x8_bf16 {S}, {K2(kb)}, {Q2(t)}, {S}"]

def slot(a, hf, t):
    X = V_S[t & 1]; Y = V_S[(t+1) & 1]
    E = lambda i: f"v_exp_f32 v{X+i}, v{X+i}"
    m1, m2 = qk(a, (t+1) & 1, (t+1) % 8, hf ^ 1 if t == 7 else hf)
    pv1 = f"v_smfmac_f32_32x32x32_bf16 {O((t-1) % 8)}, {VF(hf ^ 1 if t == 0 else hf, 1)}, {vr(Y+8, 8)}, v{V_IDX}"
    pv0 = f"v_smfmac_f32_32x32x32_bf16 {O(t)}, {VF(hf, 0)}, {vr(X, 8)}, v{V_IDX}"
    if t == 7:
        a("s_waitcnt vmcnt(0)")
    a(E(0)); a(E(1))
    a(pv1)
    a(E(2))
    if t == 0:
        a(f"s_add_u32 s{S_KV}, s{S_KV}, {KV_TILE}")
    a(E(3))
    if t == 0:
        a(kv_loads(hf ^ 1, "k")[0])
    if t == 1:
        a(kv_loads(hf ^ 1, "v")[0])
    a(E(4))
    a(m1)
    a(E(5))
    if t == 0:
        a(kv_loads(hf ^ 1, "k")[1])
    if t == 1:
        a(kv_loads(hf ^ 1, "v")[1])
    a(E(6)); a(E(7))
    a(m2)
    for i in range(8, 14): a(E(i))
    a(pv0)
    a(E(14)); a(E(15))

def halfmax(a, v, t):
    for sh in (8, 4, 2, 1):
        a.nop(2)
        a(f"v_max_f32_dpp v{v}, v{v}, v{v} row_ror:{sh} row_mask:0xf bank_mask:0xf")
    a(f"v_mov_b32 v{t}, v{v}")
    a.nop(2)
    a(f"v_permlane16_swap_b32 v{t}, v{v}")
    a.nop(1)
    a(f"v_max_f32 v{v}, v{v}, v{t}")

def gen(a):
    kernel_header(a, NAME)
    a("s_cmp_ge_u32 s2, 256")
    a("s_cbranch_scc1 K2_END")
    P = Prof(a, 1)
    P.stamp(True); P.stamp()
    a(f"s_load_dwordx2 s[{S_WS}:{S_WS+1}], s[0:1], 80")
    a(f"v_and_b32 v{V_LANE}, 63, v0")
    a(f"v_lshrrev_b32 v{V_T}, 6, v0")
    a(f"v_lshlrev_b32 v{V_O16}, 4, v{V_LANE}")
    a(f"v_readfirstlane_b32 s{S_W}, v{V_T}")
    a(f"v_lshlrev_b32 v{V_O8}, 3, v{V_LANE}")
    a(f"s_lshr_b32 s{S_RB}, s2, 2")
    a(f"s_and_b32 s{S_HG}, s2, 3")
    a(f"v_cmp_gt_u32 vcc, 32, v{V_LANE}")
    a(f"v_add_u32 v{V_T+1}, 1024, v{V_O8}")
    a(f"v_mov_b32 v{V_T+2}, {OOB}")
    a(f"v_cndmask_b32 v{V_T+1}, v{V_T+2}, v{V_T+1}, vcc")
    a(f"v_lshlrev_b32 v{V_T+3}, 2, v{V_LANE}")
    a(f"s_lshl_b32 s{S_T}, s{S_RB}, 5")
    a(f"s_lshl_b32 s{S_T+1}, s{S_HG}, 3")
    a(f"s_add_u32 s{S_T}, s{S_T}, s{S_T+1}")
    a(f"s_mul_i32 s{S_T}, s{S_T}, 1280")
    if QF_OFF: a(f"s_add_u32 s{S_T}, s{S_T}, {QF_OFF}")
    a(f"s_mul_i32 s{S_KV}, s{S_W}, {16*KV_TILE}")
    a(f"s_add_u32 s{S_KV}, s{S_KV}, {KV_OFF}")
    a(f"s_mov_b32 s{S_T+2}, {ST_OFF}")
    a("s_waitcnt lgkmcnt(0)")
    srd(a, S_SRD, S_WS, S_WS+1, WS_SIZE)
    for t in range(8):
        a(f"buffer_load_dwordx4 {Q1(t)}, v{V_O16}, {SRD}, s{S_T} offen")
        a(f"buffer_load_dwordx2 {Q2(t)}, v{V_T+1}, {SRD}, s{S_T} offen")
        if t < 7: a(f"s_add_u32 s{S_T}, s{S_T}, 1280")
    a(f"buffer_load_dword v{V_T+4}, v{V_T+3}, {SRD}, s{S_T+2} offen")
    for l in kv_loads(0, "k") + kv_loads(0, "v"): a(l)
    for i in range(128): a(f"v_accvgpr_write_b32 a{i}, 0")
    for i in range(16): a(f"v_mov_b32 v{V_S[1]+i}, 0")
    for i in range(8): a(f"v_mov_b32 v{V_V+8+i}, 0")
    a(f"v_mov_b32 v{V_IDX}, 0xdddddddd")
    P.stamp()
    a("s_waitcnt vmcnt(4)")
    P.stamp()
    qm = V_T2; tq = V_T2+1
    a(f"v_mov_b32 v{qm}, 0")
    for t in range(8):
        a(f"v_mov_b32 v{tq}, 0")
        a.nop(1)
        for j in range(4):
            a(f"v_dot2_f32_bf16 v{tq}, v{V_Q1+4*t+j}, v{V_Q1+4*t+j}, v{tq}")
        for j in range(2):
            a(f"v_dot2_f32_bf16 v{tq}, v{V_Q2+2*t+j}, v{V_Q2+2*t+j}, v{tq}")
        a.nop(3)
        a(f"v_max_f32 v{qm}, v{qm}, v{tq}")
    halfmax(a, qm, tq)
    a(f"v_mov_b32 v{tq}, v{qm}")
    a.nop(2)
    a(f"v_permlane32_swap_b32 v{tq}, v{qm}")
    a.nop(1)
    a(f"v_add_f32 v{qm}, v{qm}, v{tq}")
    st = V_T+4
    halfmax(a, st, tq)
    a(f"v_mov_b32 v{tq}, v{st}")
    a.nop(2)
    a(f"v_permlane32_swap_b32 v{tq}, v{st}")
    a.nop(1)
    a(f"v_mul_f32 v{qm}, v{qm}, v{tq}")
    a(f"v_mov_b32 v{V_T2+2}, {f2h(2.0**40)}")
    a(f"v_cmp_ge_f32 vcc, {f2h(3600.0/1.03)}, v{qm}")
    a(f"v_cmp_ge_f32 s[{S_T+4}:{S_T+5}], v{V_T2+2}, v{st}")
    a.nop(4)
    a(f"s_and_b64 s[{S_T+4}:{S_T+5}], s[{S_T+4}:{S_T+5}], vcc")
    a("s_cbranch_scc0 K2_FALLBACK")
    a.label("K2_JOIN")
    a("s_waitcnt vmcnt(0)")
    for l in qk(a, 0, 0, 0): a(l)
    a.nop(12)
    P.stamp()
    a(f"s_mov_b32 s{S_IT}, 8")
    a(".p2align 6")
    a.label("K2_LOOP")
    for hf in range(2):
        for t in range(8):
            slot(a, hf, t)
    a(f"s_sub_u32 s{S_IT}, s{S_IT}, 1")
    a(f"s_cmp_lg_u32 s{S_IT}, 0")
    a("s_cbranch_scc1 K2_LOOP")
    a.nop(1)
    a(f"v_smfmac_f32_32x32x32_bf16 {O(7)}, {VF(1, 1)}, {vr(V_S[1]+8, 8)}, v{V_IDX}")
    a("s_waitcnt vmcnt(0)")
    P.stamp()
    a.nop(16)
    own = 12; oth = 36
    for d in range(4):
        a(f"s_cmp_eq_u32 s{S_W}, {d}")
        a(f"s_cbranch_scc1 K2_OWN{d}")
        a(f"s_sub_u32 s{S_T}, s{S_W}, {d+1}")
        a(f"s_and_b32 s{S_T}, s{S_T}, 3")
        a(f"s_mul_i32 s{S_T}, s{S_T}, 6144")
        a(f"s_add_u32 s{S_T}, s{S_T}, {d*18432}")
        a(f"v_add_u32 v{V_T}, s{S_T}, v{V_O16}")
        for e in range(2):
            for i in range(3):
                a(f"ds_write_b128 v{V_T}, {ar(16*(2*d+e) + 4*i, 4)} offset:{(e*3+i)*1024}")
        a(f"s_branch K2_NEXT{d}")
        a.label(f"K2_OWN{d}")
        for e in range(2):
            for i in range(12):
                a(f"v_accvgpr_read_b32 v{own + e*12 + i}, a{16*(2*d+e) + i}")
        a.label(f"K2_NEXT{d}")
    a("s_waitcnt lgkmcnt(0)")
    a("s_barrier")
    P.stamp()
    a(f"s_mul_i32 s{S_T}, s{S_W}, 18432")
    a(f"v_add_u32 v{V_T}, s{S_T}, v{V_O16}")
    for sl in range(3):
        for k in range(6):
            a(f"ds_read_b128 {vr(oth + sl*24 + k*4, 4)}, v{V_T} offset:{sl*6144 + k*1024}")
    n = V_T+1; h = V_T+2
    a(f"v_and_b32 v{n}, 31, v{V_LANE}")
    a(f"v_lshrrev_b32 v{h}, 5, v{V_LANE}")
    a(f"v_lshrrev_b32 v{V_T+3}, 4, v{n}")
    a(f"s_lshl_b32 s{S_T+1}, s{S_RB}, 1")
    a(f"v_add_u32 v{V_T+3}, s{S_T+1}, v{V_T+3}")
    a(f"v_mul_u32_u24 v{V_T+3}, {AF_STEPS*1024}, v{V_T+3}")
    a(f"v_and_b32 v{V_T+4}, 15, v{n}")
    a(f"v_lshl_add_u32 v{V_T+3}, v{V_T+4}, 4, v{V_T+3}")
    a(f"v_add_u32 v{V_T+3}, {AF_OFF + 54*1024}, v{V_T+3}")
    a(f"s_lshl_b32 s{S_T+2}, s{S_HG}, 3")
    a(f"s_lshl_b32 s{S_T+3}, s{S_W}, 1")
    a(f"s_add_u32 s{S_T+2}, s{S_T+2}, s{S_T+3}")
    a(f"s_mul_i32 s{S_T+2}, s{S_T+2}, 5")
    ad = 108
    a(f"v_cmp_gt_u32 vcc, 32, v{V_LANE}")
    a(f"v_mov_b32 v{V_T2+1}, {OOB}")
    for e in range(2):
        for i in range(3):
            q = V_T2+2; t1 = V_T2+3; dst = ad + e*3 + i
            a(f"s_add_u32 s{S_T+3}, s{S_T+2}, {5*e + 2*i}")
            a(f"v_add_u32 v{q}, s{S_T+3}, v{h}")
            a(f"v_lshrrev_b32 v{t1}, 3, v{q}")
            a(f"v_lshl_add_u32 v{dst}, v{t1}, 10, v{V_T+3}")
            a(f"v_and_b32 v{t1}, 3, v{q}")
            a(f"v_lshl_add_u32 v{dst}, v{t1}, 8, v{dst}")
            a(f"v_bfe_u32 v{t1}, v{q}, 2, 1")
            a(f"v_lshl_add_u32 v{dst}, v{t1}, 3, v{dst}")
            if i == 2:
                a(f"v_cndmask_b32 v{dst}, v{V_T2+1}, v{dst}, vcc")
    a("s_waitcnt lgkmcnt(0)")
    for k in range(24):
        a(f"v_add_f32 v{own+k}, v{own+k}, v{oth+k}")
        a(f"v_add_f32 v{oth+24+k}, v{oth+24+k}, v{oth+48+k}")
    for k in range(24):
        a(f"v_add_f32 v{own+k}, v{own+k}, v{oth+24+k}")
    for e in range(2):
        b = own + e*12
        l = V_T2+2; t1 = V_T2+3
        a(f"v_mov_b32 v{l}, v{b+8}")
        a(f"v_mov_b32 v{t1}, v{b+8}")
        a.nop(2)
        a(f"v_permlane32_swap_b32 v{t1}, v{l}")
        a.nop(1)
        a(f"v_rcp_f32 v{l}, v{l}")
        a.nop(1)
        for k in range(12):
            a(f"v_mul_f32 v{b+k}, v{b+k}, v{l}")
        for i in range(3):
            a(f"v_cvt_pk_bf16_f32 v{b+4*i}, v{b+4*i}, v{b+4*i+1}")
            a(f"v_cvt_pk_bf16_f32 v{b+4*i+1}, v{b+4*i+2}, v{b+4*i+3}")
            a(f"buffer_store_dwordx2 {vr(b+4*i,2)}, v{ad+e*3+i}, {SRD}, 0 offen")
    P.stamp()
    a("s_waitcnt vmcnt(0)")
    P.stamp(); P.stamp(True)
    P.dump(S_WS, S_WS+1, S_W, V_T+1)
    a.label("K2_END")
    a("s_endpgm")
    a.label("K2_FALLBACK")
    M = V_T2
    for t in range(8): a(f"v_mov_b32 v{M+t}, 0xff800000")
    a("s_waitcnt vmcnt(0)")
    a(f"s_mov_b32 s{S_IT}, 16")
    a(f"s_mov_b32 s{S_T+6}, s{S_KV}")
    a.label("K2_FB_LOOP")
    for l in kv_loads(0, "k"): a(l)
    a("s_waitcnt vmcnt(0)")
    for t in range(8):
        for l in qk(a, 0, t, 0): a(l)
        a.nop(14)
        S = V_S[0]
        for i in range(8):
            a(f"v_max3_f32 v{M+t}, v{S+2*i}, v{S+2*i+1}, v{M+t}")
        a.nop(2)
    a(f"s_add_u32 s{S_KV}, s{S_KV}, {KV_TILE}")
    a(f"s_sub_u32 s{S_IT}, s{S_IT}, 1")
    a(f"s_cmp_lg_u32 s{S_IT}, 0")
    a("s_cbranch_scc1 K2_FB_LOOP")
    a(f"s_mov_b32 s{S_KV}, s{S_T+6}")
    for l in kv_loads(0, "k"): a(l)
    a(f"s_lshl_b32 s{S_T}, s{S_W}, 11")
    a(f"v_lshlrev_b32 v{V_T}, 2, v{V_LANE}")
    a(f"v_add_u32 v{V_T+1}, s{S_T}, v{V_T}")
    for t in range(8):
        a(f"v_mov_b32 v{V_T+2}, v{M+t}")
        a.nop(2)
        a(f"v_permlane32_swap_b32 v{V_T+2}, v{M+t}")
        a.nop(1)
        a(f"v_max_f32 v{M+t}, v{M+t}, v{V_T+2}")
        a(f"ds_write_b32 v{V_T+1}, v{M+t} offset:{t*256}")
    a("s_waitcnt lgkmcnt(0)")
    a("s_barrier")
    S = V_S[0]
    a(f"v_cmp_gt_u32 vcc, 32, v{V_LANE}")
    for t in range(8):
        for w2 in range(4):
            a(f"ds_read_b32 v{S+w2}, v{V_T} offset:{w2*2048 + t*256}")
        a("s_waitcnt lgkmcnt(0)")
        a(f"v_max3_f32 v{S}, v{S}, v{S+1}, v{S+2}")
        a(f"v_max_f32 v{S}, v{S}, v{S+3}")
        a(f"v_sub_f32 v{S}, 0, v{S}")
        a(f"v_cvt_pk_bf16_f32 v{S+4}, v{S}, v{S}")
        a(f"v_and_b32 v{S+5}, 0xffff0000, v{S+4}")
        a(f"v_sub_f32 v{S+6}, v{S}, v{S+5}")
        a(f"v_cvt_pk_bf16_f32 v{S+7}, v{S+6}, v{S+6}")
        a(f"v_and_b32 v{S+8}, 0xffff0000, v{S+7}")
        a(f"v_sub_f32 v{S+9}, v{S+6}, v{S+8}")
        a(f"v_cvt_pk_bf16_f32 v{S+9}, v{S+9}, 0")
        a(f"v_lshrrev_b32 v{S+5}, 16, v{S+5}")
        a(f"v_or_b32 v{S+5}, v{S+5}, v{S+8}")
        a(f"v_cndmask_b32 v{V_Q2+2*t}, v{S+5}, v{V_Q2+2*t}, vcc")
        a(f"v_cndmask_b32 v{V_Q2+2*t+1}, v{S+9}, v{V_Q2+2*t+1}, vcc")
    a("s_barrier")
    a.nop(2)
    a("s_branch K2_JOIN")
    return kernel_desc(NAME, NV, NA)
```

```python
from asmlib import *
import struct
def f2h(x): return hex(struct.unpack('<I', struct.pack('<f', x))[0])

NAME = "k3_out_kernel"
NS = 4
STAGE = 36864
LDS = NS * STAGE
LOG2E = 1.4426950408889634
S_WSRD = 4; S_ASRD = 8; S_XSRD = 12; S_OSRD = 16
S_RB = 20; S_CB = 21; S_W = 22; S_I = 23; S_PF = 24; S_SW = 25; S_SA = 26; S_SLOT = 27; S_PSLOT = 28; S_R16 = 29
S_T = 32
S_KARG = 44
P_X, P_WQ, P_WK, P_WV, P_WO, P_BX, P_W1, P_W2, P_OUT, P_DBG, P_WS = [S_KARG + 2*i for i in range(11)]
V_LANE = 1; V_R = 2; V_G = 3; V_WOFF = 4
V_O16 = 9; V_WRD0 = 10; V_ARD0 = 11; V_WRD = 12; V_ARD = 13; V_T = 14
V_X = 24
V_OADDR = 34
V_WF = 36
V_AF = 76
V_ACC = 84
V_Y = 104
NV = 128

def gen(a):
    kernel_header(a, NAME)
    a("s_cmp_ge_u32 s2, 256")
    a("s_cbranch_scc1 K3_END")
    P = Prof(a, 2)
    P.stamp(True); P.stamp()
    a(f"s_load_dwordx16 s[{S_KARG}:{S_KARG+15}], s[0:1], 0")
    a(f"s_load_dwordx4 s[{S_KARG+16}:{S_KARG+19}], s[0:1], 64")
    a(f"s_load_dwordx2 s[{S_KARG+20}:{S_KARG+21}], s[0:1], 80")
    a(f"v_and_b32 v{V_LANE}, 63, v0")
    a(f"v_lshrrev_b32 v{V_T}, 6, v0")
    a(f"v_and_b32 v{V_R}, 15, v0")
    a(f"v_readfirstlane_b32 s{S_W}, v{V_T}")
    a(f"v_bfe_u32 v{V_G}, v0, 4, 2")
    a(f"v_lshlrev_b32 v{V_O16}, 4, v{V_LANE}")
    T = S_T
    a(f"s_and_b32 s{T}, s2, 7")
    a(f"s_lshr_b32 s{T+1}, s2, 3")
    a(f"s_lshr_b32 s{T+2}, s{T}, 1")
    a(f"s_lshl_b32 s{T+2}, s{T+2}, 3")
    a(f"s_lshr_b32 s{T+3}, s{T+1}, 2")
    a(f"s_add_u32 s{S_RB}, s{T+2}, s{T+3}")
    a(f"s_and_b32 s{T+2}, s{T}, 1")
    a(f"s_lshl_b32 s{T+2}, s{T+2}, 2")
    a(f"s_and_b32 s{T+3}, s{T+1}, 3")
    a(f"s_add_u32 s{S_CB}, s{T+2}, s{T+3}")
    a(f"s_lshl_b32 s{S_R16}, s{S_RB}, 2")
    a(f"s_add_u32 s{S_R16}, s{S_R16}, s{S_W}")
    a(f"s_mul_i32 s{T}, s{S_CB}, 160")
    for jj in range(5):
        t0, t1, t2 = V_T+1, V_T+2, V_T+3
        a(f"v_add_u32 v{t0}, {64*jj}, v{V_LANE}")
        a(f"v_mul_u32_u24 v{t1}, 6554, v{t0}")
        a(f"v_lshrrev_b32 v{t1}, 16, v{t1}")
        a(f"v_mul_u32_u24 v{t2}, 10, v{t1}")
        a(f"v_sub_u32 v{t2}, v{t0}, v{t2}")
        a(f"v_mul_u32_u24 v{t1}, 1280, v{t1}")
        a(f"v_lshl_add_u32 v{t1}, v{t2}, 4, v{t1}")
        a(f"v_add_u32 v{V_WOFF+jj}, s{T}, v{t1}")
    a(f"v_lshrrev_b32 v{V_T+1}, 2, v{V_R}")
    a(f"v_lshl_add_u32 v{V_T+1}, v{V_G}, 2, v{V_T+1}")
    a(f"v_mul_u32_u24 v{V_T+1}, 160, v{V_T+1}")
    a(f"v_and_b32 v{V_T+2}, 3, v{V_R}")
    a(f"v_lshl_add_u32 v{V_WRD0}, v{V_T+2}, 3, v{V_T+1}")
    a(f"s_lshl_b32 s{T}, s{S_W}, 12")
    a(f"s_add_u32 s{T}, s{T}, 20480")
    a(f"v_add_u32 v{V_ARD0}, s{T}, v{V_O16}")
    a(f"s_lshl_b32 s{T+1}, s{S_R16}, 4")
    a(f"v_add_u32 v{V_T+1}, s{T+1}, v{V_R}")
    a(f"v_mul_u32_u24 v{V_T+1}, 1280, v{V_T+1}")
    a(f"v_lshl_add_u32 v{V_T+1}, v{V_G}, 3, v{V_T+1}")
    a(f"s_mul_i32 s{T+1}, s{S_CB}, 160")
    a(f"v_add_u32 v{V_OADDR}, s{T+1}, v{V_T+1}")
    a(f"s_mul_i32 s{S_SW}, s{S_W}, 40960")
    a(f"s_mul_i32 s{S_SA}, s{S_R16}, {54*1024}")
    a(f"s_add_u32 s{S_SA}, s{S_SA}, {HF_OFF}")
    a(f"s_mov_b32 s{S_PF}, 0")
    a(f"s_mov_b32 s{S_PSLOT}, 0")
    a("s_waitcnt lgkmcnt(0)")
    srd(a, S_WSRD, P_W2, P_W2+1, 1728*1280)
    srd(a, S_ASRD, P_WS, P_WS+1, WS_SIZE)
    srd(a, S_XSRD, P_X, P_X+1, 2048*1280)
    srd(a, S_OSRD, P_OUT, P_OUT+1, 2048*1280)
    WS_ = f"s[{S_WSRD}:{S_WSRD+3}]"; AS_ = f"s[{S_ASRD}:{S_ASRD+3}]"
    cnt = [0]
    def prefetch():
        k = cnt[0]; cnt[0] += 1
        a(f"s_cmp_lg_u32 s{S_PF}, 14")
        a(f"s_cbranch_scc1 K3_PF{k}")
        a(f"s_mov_b32 s{S_WSRD}, s{P_WO}")
        a(f"s_and_b32 s{S_WSRD+1}, s{P_WO+1}, 0xffff")
        a(f"s_mov_b32 s{S_WSRD+2}, {640*1280}")
        a(f"s_mul_i32 s{S_SW}, s{S_W}, 40960")
        a(f"s_mul_i32 s{S_SA}, s{S_R16}, {20*1024}")
        a(f"s_add_u32 s{S_SA}, s{S_SA}, {OF_OFF}")
        a.label(f"K3_PF{k}")
        a(f"s_mul_i32 s{T}, s{S_W}, 5120")
        a(f"s_add_u32 s{T}, s{T}, s{S_PSLOT}")
        for jj in range(5):
            a(f"s_add_u32 m0, s{T}, {jj*1024}")
            a("s_nop 0")
            a(f"buffer_load_dwordx4 v{V_WOFF+jj}, {WS_}, s{S_SW} offen lds")
        a(f"s_lshl_b32 s{T}, s{S_W}, 12")
        a(f"s_add_u32 s{T}, s{T}, s{S_PSLOT}")
        a(f"s_add_u32 m0, s{T}, 20480")
        a("s_nop 0")
        for sub in range(4):
            a(f"buffer_load_dwordx4 v{V_O16}, {AS_}, s{S_SA} offen offset:{sub*1024} lds")
        a(f"s_add_u32 s{S_SW}, s{S_SW}, {4*40960}")
        a(f"s_add_u32 s{S_SA}, s{S_SA}, 4096")
        a(f"s_add_u32 s{S_PF}, s{S_PF}, 1")
        a(f"s_add_u32 s{S_PSLOT}, s{S_PSLOT}, {STAGE}")
        a(f"s_cmp_eq_u32 s{S_PSLOT}, {NS*STAGE}")
        a(f"s_cselect_b32 s{S_PSLOT}, 0, s{S_PSLOT}")
    for gi in range(5):
        a(f"buffer_load_dwordx2 {vr(V_X+2*gi,2)}, v{V_OADDR}, s[{S_XSRD}:{S_XSRD+3}], 0 offen offset:{gi*32}")
    for st in range(NS-1):
        prefetch()
    for i in range(20): a(f"v_mov_b32 v{V_ACC+i}, 0")
    a(f"s_mov_b32 s{S_I}, 0")
    a(f"s_mov_b32 s{S_SLOT}, 0")
    P.stamp()
    if PROFILE_ON():
        a(f"s_waitcnt vmcnt({9*(NS-2)})")
        P.stamp()
    def reads(sub, buf):
        r = [f"ds_read_b128 {vr(V_AF+4*buf,4)}, v{V_ARD} offset:{sub*1024}"]
        for gi in range(5):
            for hf in range(2):
                r.append(f"ds_read_b64_tr_b16 {vr(V_WF+20*buf+4*gi+2*hf,2)}, v{V_WRD} offset:{sub*5120 + gi*32 + hf*2560}")
        return r
    def mfmas(buf):
        return [f"v_mfma_f32_16x16x32_bf16 {vr(V_ACC+4*gi,4)}, {vr(V_WF+20*buf+4*gi,4)}, {vr(V_AF+4*buf,4)}, {vr(V_ACC+4*gi,4)}" for gi in range(5)]
    a(".p2align 6")
    a.label("K3_LOOP")
    a(f"s_waitcnt vmcnt({9*(NS-2)})")
    a("s_barrier")
    a(f"v_add_u32 v{V_WRD}, s{S_SLOT}, v{V_WRD0}")
    a(f"v_add_u32 v{V_ARD}, s{S_SLOT}, v{V_ARD0}")
    for r in reads(0, 0): a(r)
    prefetch()
    a(f"s_cmp_lg_u32 s{S_I}, 14")
    a("s_cbranch_scc1 K3_NOSW")
    for i in range(20):
        a(f"v_mov_b32 v{V_Y+i}, v{V_ACC+i}")
        a(f"v_mov_b32 v{V_ACC+i}, 0")
    a.label("K3_NOSW")
    for sub in range(4):
        buf = sub & 1
        a("s_waitcnt lgkmcnt(0)")
        nx = reads(sub+1, buf ^ 1) if sub < 3 else []
        mm = mfmas(buf)
        for gi in range(5):
            a(mm[gi])
            for r in nx[2*gi + (1 if gi else 0): 2*gi + 3] if gi == 0 else nx[2*gi+1: 2*gi+3]:
                a(r)
        if sub == 1:
            a(f"s_cmp_eq_u32 s{S_I}, 13")
            a("s_cbranch_scc1 K3_SKIP")
    a.label("K3_SKIP")
    a("s_waitcnt lgkmcnt(0)")
    a(f"s_add_u32 s{S_SLOT}, s{S_SLOT}, {STAGE}")
    a(f"s_cmp_eq_u32 s{S_SLOT}, {NS*STAGE}")
    a(f"s_cselect_b32 s{S_SLOT}, 0, s{S_SLOT}")
    a(f"s_add_u32 s{S_I}, s{S_I}, 1")
    a(f"s_cmp_lt_u32 s{S_I}, 19")
    a("s_cbranch_scc1 K3_LOOP")
    a("s_waitcnt vmcnt(0)")
    P.stamp()
    a.nop(8)
    for gi in range(5):
        y = V_Y + 4*gi; s_ = V_ACC + 4*gi; x = V_X + 2*gi; t = V_T
        for j in range(4):
            a(f"v_mul_f32 v{t+j}, {f2h(-LOG2E)}, v{y+j}")
        for j in range(4):
            a(f"v_exp_f32 v{t+j}, v{t+j}")
        a.nop(1)
        for j in range(4):
            a(f"v_add_f32 v{t+j}, 1.0, v{t+j}")
        for j in range(4):
            a(f"v_rcp_f32 v{t+j}, v{t+j}")
        a.nop(1)
        for j in range(4):
            a(f"v_mul_f32 v{t+j}, v{t+j}, v{y+j}")
        a(f"v_lshlrev_b32 v{t+4}, 16, v{x}")
        a(f"v_and_b32 v{t+5}, 0xffff0000, v{x}")
        a(f"v_lshlrev_b32 v{t+6}, 16, v{x+1}")
        a(f"v_and_b32 v{t+7}, 0xffff0000, v{x+1}")
        for j in range(4):
            a(f"v_fmac_f32 v{t+4+j}, v{t+j}, v{s_+j}")
        a(f"v_cvt_pk_bf16_f32 v{x}, v{t+4}, v{t+5}")
        a(f"v_cvt_pk_bf16_f32 v{x+1}, v{t+6}, v{t+7}")
        a(f"buffer_store_dwordx2 {vr(x,2)}, v{V_OADDR}, s[{S_OSRD}:{S_OSRD+3}], 0 offen offset:{gi*32}")
    P.stamp()
    a("s_waitcnt vmcnt(0)")
    P.stamp(); P.stamp(True)
    P.dump(P_WS, P_WS+1, S_W, V_T)
    a.label("K3_END")
    a("s_endpgm")
    return kernel_desc(NAME, NV)
```

```python
import sys
from build import *
base = build([k1, k2, k3])
def add_empty(txt, n, where="end"):
    lines = txt.split("\n")
    idx = max(i for i, l in enumerate(lines) if l.startswith("; @launch"))
    first = min(i for i, l in enumerate(lines) if l.startswith("; @launch"))
    add = ["; @launch kernel=empty_kernel grid=(256,1,1) block=(256,1,1) lds=0"] * n
    if where == "end": lines[idx+1:idx+1] = add
    else: lines[first:first] = add
    txt = "\n".join(lines)
    txt = txt.replace('.section .rodata,"a"', '.globl empty_kernel\n.p2align 8\n.type empty_kernel,@function\nempty_kernel:\n    s_endpgm\n.section .rodata,"a"', 1)
    txt += ".p2align 6\n" + kernel_desc("empty_kernel", 8)
    return txt
open("v_base.s", "w").write(base)
open("v_e1.s", "w").write(add_empty(base, 1))
open("v_e4.s", "w").write(add_empty(base, 4))
open("v_s1.s", "w").write(add_empty(base, 1, "start"))
```

```python
import sys
from build import *
base = build([k1, k2, k3])
def add_empty(txt, n, where="end"):
    lines = txt.split("\n")
    idx = max(i for i, l in enumerate(lines) if l.startswith("; @launch"))
    first = min(i for i, l in enumerate(lines) if l.startswith("; @launch"))
    add = ["; @launch kernel=empty_kernel grid=(256,1,1) block=(256,1,1) lds=0"] * n
    if where == "end": lines[idx+1:idx+1] = add
    else: lines[first:first] = add
    txt = "\n".join(lines)
    txt = txt.replace('.section .rodata,"a"', '.globl empty_kernel\n.p2align 8\n.type empty_kernel,@function\nempty_kernel:\n    s_endpgm\n.section .rodata,"a"', 1)
    txt += ".p2align 6\n" + kernel_desc("empty_kernel", 8)
    return txt
open("v_base.s", "w").write(base)
open("v_e1.s", "w").write(add_empty(base, 1))
open("v_e4.s", "w").write(add_empty(base, 4))
open("v_s1.s", "w").write(add_empty(base, 1, "start"))
open("v_s2.s", "w").write(add_empty(base, 2, "start"))
open("v_s3.s", "w").write(add_empty(base, 3, "start"))
t = add_empty(base, 1, "start")
lines = t.split("\n")
li = [i for i, l in enumerate(lines) if l.startswith("; @launch")]
lines[li[0]], lines[li[1]] = lines[li[1]], lines[li[0]]
open("v_m1.s", "w").write("\n".join(lines))
```

```python
class Asm:
    def __init__(self):
        self.L = []
    def __call__(self, s):
        for line in s.strip("\n").split("\n"):
            line = line.strip()
            if not line:
                continue
            if line.endswith(":") or line.startswith("."):
                self.L.append(line)
            else:
                self.L.append("    " + line)
    def label(self, l):
        self.L.append(l + ":")
    def comment(self, c):
        self.L.append("    ; " + c)
    def nop(self, n):
        while n > 0:
            k = min(n, 16)
            self.L.append(f"    s_nop {k-1}")
            n -= k
    def text(self):
        return "\n".join(self.L) + "\n"

def vr(base, n=1):
    return f"v{base}" if n == 1 else f"v[{base}:{base+n-1}]"
def ar(base, n=1):
    return f"a{base}" if n == 1 else f"a[{base}:{base+n-1}]"
def sr(base, n=1):
    return f"s{base}" if n == 1 else f"s[{base}:{base+n-1}]"

def kernel_header(a, name):
    a(".text")
    a(f".globl {name}")
    a(".p2align 8")
    a(f".type {name},@function")
    a.label(name)

def kernel_desc(name, nvgpr, nagpr=0, nsgpr=102):
    accum = (nvgpr + 3) // 4 * 4
    total = accum + nagpr if nagpr else nvgpr
    return f""".amdhsa_kernel {name}
  .amdhsa_next_free_vgpr {total}
  .amdhsa_next_free_sgpr {nsgpr}
  .amdhsa_accum_offset {accum}
  .amdhsa_group_segment_fixed_size 0
  .amdhsa_kernarg_size 88
  .amdhsa_user_sgpr_count 2
  .amdhsa_user_sgpr_kernarg_segment_ptr 1
  .amdhsa_system_sgpr_workgroup_id_x 1
  .amdhsa_float_denorm_mode_32 3
.end_amdhsa_kernel
"""

def srd(a, s, lo, hi, size):
    a(f"s_mov_b32 s{s}, s{lo}")
    a(f"s_and_b32 s{s+1}, s{hi}, 0xffff")
    a(f"s_mov_b32 s{s+2}, {size}")
    a(f"s_mov_b32 s{s+3}, 0x00020000")

QF_OFF = 0x0
KV_OFF = 0x280000
KV_TILE = 3584
ST_OFF = 0x2B8000
HF_OFF = 0x2C0000
OF_OFF = 0x980000
WS_SIZE = 0xC00000
OOB = 0x7FFF0000

PROFILE = False
PROF_OFF = 0x1000000
S_STAMP = 68
class Prof:
    def __init__(self, a, kidx):
        self.a = a; self.k = kidx; self.n = 0
    def stamp(self, real=False):
        if not PROFILE_ON(): return
        a = self.a
        assert self.n < 14
        a(f"{'s_memrealtime' if real else 's_memtime'} s[{S_STAMP+2*self.n}:{S_STAMP+2*self.n+1}]")
        a("s_waitcnt lgkmcnt(0)")
        self.n += 1
    def dump(self, ws_lo, ws_hi, wave_sgpr, vtmp):
        if not PROFILE_ON(): return
        a = self.a
        a(f"s_mov_b32 s96, s{ws_lo}")
        a(f"s_and_b32 s97, s{ws_hi}, 0xffff")
        a(f"s_mov_b32 s98, 0x2000000")
        a(f"s_mov_b32 s99, 0x00020000")
        a(f"s_lshl_b32 s100, s2, 2")
        a(f"s_add_u32 s100, s100, s{wave_sgpr}")
        a(f"s_lshl_b32 s100, s100, 6")
        a(f"s_add_u32 s100, s100, {PROF_OFF + self.k*0x20000}")
        for i in range(self.n):
            a(f"v_mov_b32 v{vtmp}, s{S_STAMP+2*i}")
            a(f"v_mov_b32 v{vtmp+1}, 0")
            a(f"buffer_store_dword v{vtmp}, v{vtmp+1}, s[96:99], s100 offen offset:{4*i}")
            a("s_nop 1")
        a("s_waitcnt vmcnt(0)")
        if DBG_ON():
            a("s_load_dwordx2 s[96:97], s[0:1], 72")
            a("s_waitcnt lgkmcnt(0)")
            a(f"s_sub_u32 s96, s96, {512*self.k}")
            a("s_subb_u32 s97, s97, 0")
            a("s_and_b32 s97, s97, 0xffff")
            a("s_mov_b32 s98, 256")
            a("s_mov_b32 s99, 0x00020000")
            a(f"s_not_b32 s100, s{S_STAMP}")
            a(f"v_mov_b32 v{vtmp}, s100")
            a(f"v_mov_b32 v{vtmp+1}, 0")
            a(f"buffer_atomic_umax v{vtmp}, v{vtmp+1}, s[96:99], 0 offen offset:{16*self.k}")
            a("s_nop 1")
            a(f"v_mov_b32 v{vtmp}, s{S_STAMP+2*(self.n-1)}")
            a(f"buffer_atomic_umax v{vtmp}, v{vtmp+1}, s[96:99], 0 offen offset:{16*self.k+4}")
            a("s_nop 1")
            a(f"v_mov_b32 v{vtmp}, s{S_STAMP}")
            a(f"buffer_atomic_umax v{vtmp}, v{vtmp+1}, s[96:99], 0 offen offset:{16*self.k+8}")
            a("s_nop 1")
            a(f"s_sub_u32 s100, s{S_STAMP+2*(self.n-2)}, s{S_STAMP+2}")
            a(f"v_mov_b32 v{vtmp}, s100")
            a(f"buffer_atomic_umax v{vtmp}, v{vtmp+1}, s[96:99], 0 offen offset:{16*self.k+12}")
            a("s_waitcnt vmcnt(0)")
_prof = [False]
_dbg = [False]
def DBG_ON(): return _dbg[0]
def set_dbg(x): _dbg[0] = x
def PROFILE_ON(): return _prof[0]
def set_profile(x): _prof[0] = x
```

```python
class Asm:
    def __init__(self):
        self.L = []
    def __call__(self, s):
        for line in s.strip("\n").split("\n"):
            line = line.strip()
            if not line:
                continue
            if line.endswith(":") or line.startswith("."):
                self.L.append(line)
            else:
                self.L.append("    " + line)
    def label(self, l):
        self.L.append(l + ":")
    def comment(self, c):
        self.L.append("    ; " + c)
    def nop(self, n):
        while n > 0:
            k = min(n, 16)
            self.L.append(f"    s_nop {k-1}")
            n -= k
    def text(self):
        return "\n".join(self.L) + "\n"

def vr(base, n=1):
    return f"v{base}" if n == 1 else f"v[{base}:{base+n-1}]"
def ar(base, n=1):
    return f"a{base}" if n == 1 else f"a[{base}:{base+n-1}]"
def sr(base, n=1):
    return f"s{base}" if n == 1 else f"s[{base}:{base+n-1}]"

def kernel_header(a, name):
    a(".text")
    a(f".globl {name}")
    a(".p2align 8")
    a(f".type {name},@function")
    a.label(name)

def kernel_desc(name, nvgpr, nagpr=0, nsgpr=102):
    accum = (nvgpr + 3) // 4 * 4
    total = accum + nagpr if nagpr else nvgpr
    return f""".amdhsa_kernel {name}
  .amdhsa_next_free_vgpr {total}
  .amdhsa_next_free_sgpr {nsgpr}
  .amdhsa_accum_offset {accum}
  .amdhsa_group_segment_fixed_size 0
  .amdhsa_kernarg_size 88
  .amdhsa_user_sgpr_count 2
  .amdhsa_user_sgpr_kernarg_segment_ptr 1
  .amdhsa_system_sgpr_workgroup_id_x 1
  .amdhsa_float_denorm_mode_32 3
.end_amdhsa_kernel
"""

def srd(a, s, lo, hi, size):
    a(f"s_mov_b32 s{s}, s{lo}")
    a(f"s_and_b32 s{s+1}, s{hi}, 0xffff")
    a(f"s_mov_b32 s{s+2}, {size}")
    a(f"s_mov_b32 s{s+3}, 0x00020000")

QF_OFF = 0x0
KV_OFF = 0x280000
KV_TILE = 3584
ST_OFF = 0x2B8000
HF_OFF = 0x2C0000
OF_OFF = 0x980000
WS_SIZE = 0xC00000
OOB = 0x7FFF0000

PROFILE = False
PROF_OFF = 0x1000000
S_STAMP = 68
class Prof:
    def __init__(self, a, kidx):
        self.a = a; self.k = kidx; self.n = 0
    def stamp(self, real=False):
        if not PROFILE_ON(): return
        a = self.a
        assert self.n < 14
        a(f"{'s_memrealtime' if real else 's_memtime'} s[{S_STAMP+2*self.n}:{S_STAMP+2*self.n+1}]")
        a("s_waitcnt lgkmcnt(0)")
        self.n += 1
    def dump(self, ws_lo, ws_hi, wave_sgpr, vtmp):
        if not PROFILE_ON(): return
        a = self.a
        a(f"s_mov_b32 s96, s{ws_lo}")
        a(f"s_and_b32 s97, s{ws_hi}, 0xffff")
        a(f"s_mov_b32 s98, 0x2000000")
        a(f"s_mov_b32 s99, 0x00020000")
        a(f"s_lshl_b32 s100, s2, 2")
        a(f"s_add_u32 s100, s100, s{wave_sgpr}")
        a(f"s_lshl_b32 s100, s100, 6")
        a(f"s_add_u32 s100, s100, {PROF_OFF + self.k*0x20000}")
        for i in range(self.n):
            a(f"v_mov_b32 v{vtmp}, s{S_STAMP+2*i}")
            a(f"v_mov_b32 v{vtmp+1}, 0")
            a(f"buffer_store_dword v{vtmp}, v{vtmp+1}, s[96:99], s100 offen offset:{4*i}")
            a("s_nop 1")
        a("s_waitcnt vmcnt(0)")
        if DBG_ON():
            a(f"s_cmp_lg_u32 s{wave_sgpr}, 0")
            a(f"s_cbranch_scc1 DBG_SKIP{self.k}")
            a("s_cmp_eq_u32 s2, 0")
            a(f"s_cbranch_scc1 DBG_DO{self.k}")
            a("s_cmp_lg_u32 s2, 255")
            a(f"s_cbranch_scc1 DBG_SKIP{self.k}")
            a.label(f"DBG_DO{self.k}")
            a("s_load_dwordx2 s[96:97], s[0:1], 72")
            a("s_waitcnt lgkmcnt(0)")
            a(f"s_sub_u32 s96, s96, {512*self.k}")
            a("s_subb_u32 s97, s97, 0")
            a("s_and_b32 s97, s97, 0xffff")
            a("s_mov_b32 s98, 1536")
            a("s_mov_b32 s99, 0x00020000")
            a("s_cmp_eq_u32 s2, 0")
            a(f"s_cselect_b32 s100, {16*self.k}, {16*self.k+8}")
            a(f"v_mov_b32 v{vtmp}, s{S_STAMP}")
            a(f"v_mov_b32 v{vtmp+1}, s{S_STAMP+2*(self.n-1)}")
            a(f"v_mov_b32 v{vtmp+2}, 0")
            for r in range(3):
                a(f"buffer_store_dwordx2 v[{vtmp}:{vtmp+1}], v{vtmp+2}, s[96:99], s100 offen offset:{512*r}")
            a("s_waitcnt vmcnt(0)")
            a.label(f"DBG_SKIP{self.k}")
_prof = [False]
_dbg = [False]
def DBG_ON(): return _dbg[0]
def set_dbg(x): _dbg[0] = x
def PROFILE_ON(): return _prof[0]
def set_profile(x): _prof[0] = x
```

```python
class Asm:
    def __init__(self):
        self.L = []
    def __call__(self, s):
        for line in s.strip("\n").split("\n"):
            line = line.strip()
            if not line:
                continue
            if line.endswith(":") or line.startswith("."):
                self.L.append(line)
            else:
                self.L.append("    " + line)
    def label(self, l):
        self.L.append(l + ":")
    def comment(self, c):
        self.L.append("    ; " + c)
    def nop(self, n):
        while n > 0:
            k = min(n, 16)
            self.L.append(f"    s_nop {k-1}")
            n -= k
    def text(self):
        return "\n".join(self.L) + "\n"

def vr(base, n=1):
    return f"v{base}" if n == 1 else f"v[{base}:{base+n-1}]"
def ar(base, n=1):
    return f"a{base}" if n == 1 else f"a[{base}:{base+n-1}]"
def sr(base, n=1):
    return f"s{base}" if n == 1 else f"s[{base}:{base+n-1}]"

def kernel_header(a, name):
    a(".text")
    a(f".globl {name}")
    a(".p2align 8")
    a(f".type {name},@function")
    a.label(name)

def kernel_desc(name, nvgpr, nagpr=0, nsgpr=102):
    accum = (nvgpr + 3) // 4 * 4
    total = accum + nagpr if nagpr else nvgpr
    return f""".amdhsa_kernel {name}
  .amdhsa_next_free_vgpr {total}
  .amdhsa_next_free_sgpr {nsgpr}
  .amdhsa_accum_offset {accum}
  .amdhsa_group_segment_fixed_size 0
  .amdhsa_kernarg_size 88
  .amdhsa_user_sgpr_count 2
  .amdhsa_user_sgpr_kernarg_segment_ptr 1
  .amdhsa_system_sgpr_workgroup_id_x 1
  .amdhsa_float_denorm_mode_32 3
.end_amdhsa_kernel
"""

def srd(a, s, lo, hi, size):
    a(f"s_mov_b32 s{s}, s{lo}")
    a(f"s_and_b32 s{s+1}, s{hi}, 0xffff")
    a(f"s_mov_b32 s{s+2}, {size}")
    a(f"s_mov_b32 s{s+3}, 0x00020000")

QF_OFF = 0x0
KV_OFF = 0x280000
KV_TILE = 3584
ST_OFF = 0x2B8000
AF_OFF = 0x2C0000
AF_STEPS = 74
WF_OFF = 0xC00000
WS_SIZE = 0xF00000
OOB = 0x7FFF0000

PROFILE = False
PROF_OFF = 0x1000000
S_STAMP = 68
class Prof:
    def __init__(self, a, kidx):
        self.a = a; self.k = kidx; self.n = 0
    def stamp(self, real=False):
        if not PROFILE_ON(): return
        a = self.a
        assert self.n < 14
        a(f"{'s_memrealtime' if real else 's_memtime'} s[{S_STAMP+2*self.n}:{S_STAMP+2*self.n+1}]")
        a("s_waitcnt lgkmcnt(0)")
        self.n += 1
    def dump(self, ws_lo, ws_hi, wave_sgpr, vtmp):
        if not PROFILE_ON(): return
        a = self.a
        a(f"s_mov_b32 s96, s{ws_lo}")
        a(f"s_and_b32 s97, s{ws_hi}, 0xffff")
        a(f"s_mov_b32 s98, 0x2000000")
        a(f"s_mov_b32 s99, 0x00020000")
        a(f"s_lshl_b32 s100, s2, 2")
        a(f"s_add_u32 s100, s100, s{wave_sgpr}")
        a(f"s_lshl_b32 s100, s100, 6")
        a(f"s_add_u32 s100, s100, {PROF_OFF + self.k*0x20000}")
        for i in range(self.n):
            a(f"v_mov_b32 v{vtmp}, s{S_STAMP+2*i}")
            a(f"v_mov_b32 v{vtmp+1}, 0")
            a(f"buffer_store_dword v{vtmp}, v{vtmp+1}, s[96:99], s100 offen offset:{4*i}")
            a("s_nop 1")
        a("s_waitcnt vmcnt(0)")
        if DBG_ON():
            a(f"s_cmp_lg_u32 s{wave_sgpr}, 0")
            a(f"s_cbranch_scc1 DBG_SKIP{self.k}")
            a("s_cmp_eq_u32 s2, 0")
            a(f"s_cbranch_scc1 DBG_DO{self.k}")
            a("s_cmp_lg_u32 s2, 255")
            a(f"s_cbranch_scc1 DBG_SKIP{self.k}")
            a.label(f"DBG_DO{self.k}")
            a("s_load_dwordx2 s[96:97], s[0:1], 72")
            a("s_waitcnt lgkmcnt(0)")
            a(f"s_sub_u32 s96, s96, {512*self.k}")
            a("s_subb_u32 s97, s97, 0")
            a("s_and_b32 s97, s97, 0xffff")
            a("s_mov_b32 s98, 1536")
            a("s_mov_b32 s99, 0x00020000")
            a("s_cmp_eq_u32 s2, 0")
            a(f"s_cselect_b32 s100, {16*self.k}, {16*self.k+8}")
            a(f"v_mov_b32 v{vtmp}, s{S_STAMP}")
            a(f"v_mov_b32 v{vtmp+1}, s{S_STAMP+2*(self.n-1)}")
            a(f"v_mov_b32 v{vtmp+2}, 0")
            for r in range(3):
                a(f"buffer_store_dwordx2 v[{vtmp}:{vtmp+1}], v{vtmp+2}, s[96:99], s100 offen offset:{512*r}")
            a("s_waitcnt vmcnt(0)")
            a.label(f"DBG_SKIP{self.k}")
_prof = [False]
_dbg = [False]
def DBG_ON(): return _dbg[0]
def set_dbg(x): _dbg[0] = x
def PROFILE_ON(): return _prof[0]
def set_profile(x): _prof[0] = x
```

```python
from asmlib import *
import struct
def f2h(x): return hex(struct.unpack('<I', struct.pack('<f', x))[0])

NAME = "k1_proj_kernel"
LDS = 163840
X_BYTES = 81920
SLOT = 20480
QSCALE = 0.22360679774997896 * 1.4426950408889634

S_XSRD = 4; S_WSRD = 8; S_OSRD = 12
S_RB = 16; S_CB = 17; S_W = 18; S_SLOT = 19; S_STEP = 20; S_SOFF = 21; S_M0 = 22; S_CNT = 23
S_T0 = 24
S_ONES = 40; S_LO1 = 41; S_HI1 = 42
S_KARG = 44
P_X, P_WQ, P_WK, P_WV, P_WO, P_BX, P_W1, P_W2, P_OUT, P_DBG, P_WS = [S_KARG + 2*i for i in range(11)]
S_JSRD = 36
V_LANE = 1; V_R = 2; V_G = 3
V_WOFF = 4
V_X = 10
V_RSTD = 14
V_T = 18
V_WF = 32
V_XF = 72
V_RAW = 32
V_ACC = 112
V_T2 = 192
V_WRD = 224
NV = 236

def acc(gi, rt): return V_ACC + (gi * 4 + rt) * 4

def load_kernargs(a):
    a(f"s_load_dwordx16 s[{S_KARG}:{S_KARG+15}], s[0:1], 0")
    a(f"s_load_dwordx4 s[{S_KARG+16}:{S_KARG+19}], s[0:1], 64")
    a(f"s_load_dwordx2 s[{S_KARG+20}:{S_KARG+21}], s[0:1], 80")

def gen(a):
    kernel_header(a, NAME)
    a("s_cmp_ge_u32 s2, 256")
    a("s_cbranch_scc1 K1_END")
    P = Prof(a, 0)
    P.stamp(True); P.stamp()
    load_kernargs(a)
    T = S_T0
    a(f"v_and_b32 v{V_LANE}, 63, v0")
    a(f"v_lshrrev_b32 v{V_T}, 6, v0")
    a(f"v_and_b32 v{V_R}, 15, v0")
    a(f"v_readfirstlane_b32 s{S_W}, v{V_T}")
    a(f"v_bfe_u32 v{V_G}, v0, 4, 2")
    a(f"s_and_b32 s{T}, s2, 7")
    a(f"s_lshr_b32 s{T+1}, s2, 3")
    a(f"s_lshr_b32 s{T+2}, s{T}, 2")
    a(f"s_lshl_b32 s{T+2}, s{T+2}, 4")
    a(f"s_lshr_b32 s{T+3}, s{T+1}, 1")
    a(f"s_add_u32 s{S_RB}, s{T+2}, s{T+3}")
    a(f"s_and_b32 s{T+2}, s{T}, 3")
    a(f"s_lshl_b32 s{T+2}, s{T+2}, 1")
    a(f"s_and_b32 s{T+3}, s{T+1}, 1")
    a(f"s_add_u32 s{S_CB}, s{T+2}, s{T+3}")
    a(f"s_lshl_b32 s{S_SLOT}, s{S_CB}, 2")
    a(f"s_add_u32 s{S_SLOT}, s{S_SLOT}, s{S_W}")
    a(f"s_lshl_b32 s{T}, s{S_RB}, 6")
    a(f"s_lshl_b32 s{T+1}, s{S_W}, 4")
    a(f"s_add_u32 s{T}, s{T}, s{T+1}")
    a(f"v_add_u32 v{V_T}, s{T}, v{V_G}")
    a(f"v_mul_u32_u24 v{V_T}, 1280, v{V_T}")
    a(f"v_lshl_add_u32 v{V_T}, v{V_R}, 4, v{V_T}")
    xs = [V_T2+16+i for i in range(4)]
    for rg in range(4):
        a(f"v_add_u32 v{xs[rg]}, {rg*4*1280}, v{V_T}")
    a("s_waitcnt lgkmcnt(0)")
    srd(a, S_XSRD, P_X, P_X+1, 2048*1280)
    for rg in range(4):
        for t in range(5):
            a(f"buffer_load_dwordx4 {vr(V_RAW+20*rg+4*t,4)}, v{xs[rg]}, s[{S_XSRD}:{S_XSRD+3}], 0 offen offset:{256*t}")
    a(f"s_cmp_eq_u32 s{S_CB}, 7")
    a("s_cbranch_scc1 K1_SRC_PRIV")
    a(f"s_cmp_lt_u32 s{S_CB}, 2")
    a(f"s_cselect_b32 s{T}, s{P_WQ}, s{P_W1}")
    a(f"s_cselect_b32 s{T+1}, s{P_WQ+1}, s{P_W1+1}")
    a(f"s_mov_b32 s{T+2}, {640*1280}")
    a(f"s_cselect_b32 s{T+2}, s{T+2}, {640*3456}")
    a(f"s_mov_b32 s{T+3}, 1280")
    a(f"s_cselect_b32 s{T+3}, s{T+3}, 3456")
    a(f"s_cselect_b32 s{T+4}, 0, 2")
    a(f"s_sub_u32 s{T+4}, s{S_CB}, s{T+4}")
    a(f"s_mul_i32 s{T+4}, s{T+4}, 640")
    a(f"s_mul_i32 s{T+5}, s{S_W}, 320")
    t0, t1, t2, t3 = V_T+1, V_T+2, V_T+3, V_T+4
    for jj in range(5):
        a(f"v_add_u32 v{t0}, s{T+5}, v{V_LANE}")
        if jj: a(f"v_add_u32 v{t0}, {64*jj}, v{t0}")
        a(f"v_mul_u32_u24 v{t1}, 1639, v{t0}")
        a(f"v_lshrrev_b32 v{t1}, 16, v{t1}")
        a(f"v_mul_u32_u24 v{t2}, 40, v{t1}")
        a(f"v_sub_u32 v{t2}, v{t0}, v{t2}")
        a(f"v_bfe_u32 v{t3}, v{t1}, 1, 2")
        a(f"v_lshlrev_b32 v{t3}, 1, v{t3}")
        a(f"v_xor_b32 v{t2}, v{t2}, v{t3}")
        a(f"v_bfe_u32 v{t3}, v{t1}, 2, 2")
        a(f"v_lshlrev_b32 v{t3}, 3, v{t3}")
        a(f"v_and_b32 v{t0}, 3, v{t1}")
        a(f"v_add_u32 v{t3}, v{t3}, v{t0}")
        a(f"v_lshrrev_b32 v{t1}, 4, v{t1}")
        a(f"v_lshl_add_u32 v{t3}, v{t1}, 2, v{t3}")
        a(f"v_mul_lo_u32 v{t3}, v{t3}, s{T+3}")
        a(f"v_lshl_add_u32 v{t3}, v{t2}, 4, v{t3}")
        a(f"v_add_u32 v{V_WOFF+jj}, s{T+4}, v{t3}")
    a(f"v_lshrrev_b32 v{t0}, 2, v{V_R}")
    a(f"v_lshl_add_u32 v{t0}, v{V_G}, 2, v{t0}")
    a(f"v_bfe_u32 v{t1}, v{t0}, 1, 2")
    a(f"v_lshlrev_b32 v{t1}, 1, v{t1}")
    a(f"v_mul_u32_u24 v{t0}, 640, v{t0}")
    a(f"v_and_b32 v{t2}, 1, v{V_R}")
    a(f"v_lshl_add_u32 v{t0}, v{t2}, 3, v{t0}")
    a(f"v_add_u32 v{t0}, {X_BYTES}, v{t0}")
    a(f"v_bfe_u32 v{t2}, v{V_R}, 1, 1")
    a(f"s_mul_i32 s{T+5}, s{S_W}, 10")
    for i in range(5):
        a(f"v_add_u32 v{t3}, s{T+5}, v{t2}")
        if i: a(f"v_add_u32 v{t3}, {2*i}, v{t3}")
        a(f"v_xor_b32 v{t3}, v{t3}, v{t1}")
        a(f"v_lshl_add_u32 v{V_WRD+2*i}, v{t3}, 4, v{t0}")
        a(f"v_add_u32 v{V_WRD+2*i+1}, 10240, v{V_WRD+2*i}")
    a("s_branch K1_SRC_DONE")
    a.label("K1_SRC_PRIV")
    a(f"s_cmp_lt_u32 s{S_W}, 2")
    a("s_cbranch_scc1 K1_SRC_PH")
    a(f"s_cmp_eq_u32 s{S_W}, 2")
    a(f"s_cselect_b32 s{T}, s{P_WK}, s{P_WV}")
    a(f"s_cselect_b32 s{T+1}, s{P_WK+1}, s{P_WV+1}")
    a(f"s_mov_b32 s{T+2}, 25600")
    a(f"s_mov_b32 s{T+3}, 40")
    a(f"s_mov_b32 s{T+4}, 0")
    a(f"s_mov_b32 s{T+5}, 2")
    a("s_branch K1_SRC_P2")
    a.label("K1_SRC_PH")
    a(f"s_mov_b32 s{T}, s{P_W1}")
    a(f"s_mov_b32 s{T+1}, s{P_W1+1}")
    a(f"s_mov_b32 s{T+2}, {640*3456}")
    a(f"s_mov_b32 s{T+3}, 3456")
    a(f"s_mul_i32 s{T+4}, s{S_W}, 160")
    a(f"s_add_u32 s{T+4}, s{T+4}, 3200")
    a(f"s_mov_b32 s{T+5}, 9")
    a.label("K1_SRC_P2")
    for jj in range(5):
        a(f"v_add_u32 v{t0}, {64*jj}, v{V_LANE}")
        a(f"v_mul_u32_u24 v{t1}, 6554, v{t0}")
        a(f"v_lshrrev_b32 v{t1}, 16, v{t1}")
        a(f"v_mul_u32_u24 v{t2}, 10, v{t1}")
        a(f"v_sub_u32 v{t2}, v{t0}, v{t2}")
        a(f"v_min_u32 v{t2}, s{T+5}, v{t2}")
        a(f"v_bfe_u32 v{t3}, v{t1}, 2, 2")
        a(f"v_lshlrev_b32 v{t3}, 3, v{t3}")
        a(f"v_and_b32 v{t0}, 3, v{t1}")
        a(f"v_add_u32 v{t3}, v{t3}, v{t0}")
        a(f"v_lshrrev_b32 v{t1}, 4, v{t1}")
        a(f"v_lshl_add_u32 v{t3}, v{t1}, 2, v{t3}")
        a(f"v_mul_lo_u32 v{t3}, v{t3}, s{T+3}")
        a(f"v_lshl_add_u32 v{t3}, v{t2}, 4, v{t3}")
        a(f"v_add_u32 v{V_WOFF+jj}, s{T+4}, v{t3}")
    a(f"v_lshrrev_b32 v{t0}, 2, v{V_R}")
    a(f"v_lshl_add_u32 v{t0}, v{V_G}, 2, v{t0}")
    a(f"v_mul_u32_u24 v{t0}, 160, v{t0}")
    a(f"v_and_b32 v{t2}, 3, v{V_R}")
    a(f"v_lshl_add_u32 v{t0}, v{t2}, 3, v{t0}")
    a(f"s_mul_i32 s{T+5}, s{S_W}, 5120")
    a(f"s_add_u32 s{T+5}, s{T+5}, {X_BYTES}")
    a(f"v_add_u32 v{t0}, s{T+5}, v{t0}")
    for i in range(5):
        a(f"v_add_u32 v{V_WRD+2*i}, {32*i}, v{t0}")
        a(f"v_add_u32 v{V_WRD+2*i+1}, {32*i+2560}, v{t0}")
    a.label("K1_SRC_DONE")
    a(f"s_mov_b32 s{S_WSRD}, s{T}")
    a(f"s_and_b32 s{S_WSRD+1}, s{T+1}, 0xffff")
    a(f"s_mov_b32 s{S_WSRD+2}, s{T+2}")
    a(f"s_mov_b32 s{S_WSRD+3}, 0x00020000")
    a(f"s_lshl_b32 s{S_STEP}, s{T+3}, 5")
    a(f"s_mul_i32 s{S_M0}, s{S_W}, 5120")
    a(f"s_add_u32 s{S_M0}, s{S_M0}, {X_BYTES}")
    a(f"s_mov_b32 s{S_SOFF}, 0")
    def dma(slot):
        for jj in range(5):
            a(f"s_add_u32 m0, s{S_M0}, {slot*SLOT + jj*1024}")
            a("s_nop 0")
            a(f"buffer_load_dwordx4 v{V_WOFF+jj}, s[{S_WSRD}:{S_WSRD+3}], s{S_SOFF} offen lds")
        a(f"s_add_u32 s{S_SOFF}, s{S_SOFF}, s{S_STEP}")
    for i in range(4):
        a(f"v_add_u32 v{V_T+1}, {4*i}, v{V_G}")
        a(f"v_xor_b32 v{V_T+1}, v{V_T+1}, v{V_R}")
        a(f"v_lshlrev_b32 v{V_T+1}, 4, v{V_T+1}")
        a(f"v_mul_u32_u24 v{V_T+2}, 1280, v{V_R}")
        a(f"v_add_u32 v{V_X+i}, v{V_T+1}, v{V_T+2}")
    for i in range(80):
        a(f"v_mov_b32 v{V_ACC+i}, 0")
    a(f"s_mov_b32 s{S_ONES}, 0x3f803f80")
    a(f"s_mov_b32 s{S_LO1}, 0x00003f80")
    a(f"s_mov_b32 s{S_HI1}, 0x3f800000")
    srd(a, S_OSRD, P_WS, P_WS+1, WS_SIZE)
    P.stamp()
    st = V_T2
    tmp = st + 8
    for rg in range(4):
        R0 = V_RAW + 20*rg
        a("s_waitcnt vmcnt(15)")
        if rg == 0: P.stamp()
        for i in range(4): a(f"v_mov_b32 v{st+i}, 0")
        a(f"v_add_u32 v{st+7}, {4*rg}, v{V_G}")
        a(f"v_xor_b32 v{st+6}, v{st+7}, v{V_R}")
        a(f"v_lshlrev_b32 v{st+6}, 4, v{st+6}")
        a(f"s_lshl_b32 s{T+8}, s{S_W}, 4")
        a(f"v_add_u32 v{st+7}, s{T+8}, v{st+7}")
        a(f"v_mul_u32_u24 v{tmp}, 1280, v{st+7}")
        a(f"v_add_u32 v{st+6}, v{st+6}, v{tmp}")
        a(f"v_lshlrev_b32 v{st+7}, 2, v{st+7}")
        a(f"v_add_u32 v{st+7}, {X_BYTES + 3*SLOT}, v{st+7}")
        for i in range(20):
            r = R0 + i
            a(f"v_dot2_f32_bf16 v{st + (i&1)}, v{r}, s{S_ONES}, v{st + (i&1)}")
            a(f"v_dot2_f32_bf16 v{st + 2 + (i&1)}, v{r}, v{r}, v{st + 2 + (i&1)}")
        a.nop(3)
        a(f"v_add_f32 v{st}, v{st}, v{st+1}")
        a(f"v_add_f32 v{st+2}, v{st+2}, v{st+3}")
        for sh in (8, 4, 2, 1):
            a.nop(1)
            a(f"v_add_f32_dpp v{st}, v{st}, v{st} row_ror:{sh} row_mask:0xf bank_mask:0xf")
            a(f"v_add_f32_dpp v{st+2}, v{st+2}, v{st+2} row_ror:{sh} row_mask:0xf bank_mask:0xf")
        a(f"v_mul_f32 v{st+4}, {f2h(1.0/640)}, v{st}")
        a(f"v_mul_f32 v{st+2}, {f2h(1.0/640)}, v{st+2}")
        a(f"v_fma_f32 v{st+2}, -v{st+4}, v{st+4}, v{st+2}")
        a(f"v_max_f32 v{st+2}, 0, v{st+2}")
        a(f"v_add_f32 v{st+2}, 0x3727c5ac, v{st+2}")
        a(f"v_rsq_f32 v{st+5}, v{st+2}")
        a(f"v_sub_f32 v{st+4}, 0, v{st+4}")
        for t in range(5):
            for j in range(4):
                r = R0 + 4*t + j
                a(f"v_dot2_f32_bf16 v{tmp+2*j}, v{r}, s{S_LO1}, v{st+4}")
                a(f"v_dot2_f32_bf16 v{tmp+2*j+1}, v{r}, s{S_HI1}, v{st+4}")
            a.nop(1)
            for j in range(4):
                r = R0 + 4*t + j
                a(f"v_cvt_pk_bf16_f32 v{r}, v{tmp+2*j}, v{tmp+2*j+1}")
            a(f"ds_write_b128 v{st+6}, {vr(R0+4*t,4)} offset:{t*256}")
        a(f"ds_write_b32 v{st+7}, v{st+5}")
        if rg < 3:
            dma(rg)
    P.stamp()
    a("s_waitcnt vmcnt(10) lgkmcnt(0)")
    a("s_barrier")
    P.stamp()
    a(f"v_lshlrev_b32 v{V_T+5}, 2, v{V_R}")
    a(f"v_add_u32 v{V_T+5}, {X_BYTES + 3*SLOT}, v{V_T+5}")
    for rt in range(4):
        a(f"ds_read_b32 v{V_RSTD+rt}, v{V_T+5} offset:{rt*64}")
    def reads(s4, buf, it_off):
        r = []
        for rt in range(4):
            r.append(f"ds_read_b128 {vr(V_XF+16*buf+4*rt,4)}, v{V_X+s4} offset:{rt*20480 + it_off}")
        for gi in range(5):
            for hf in range(2):
                r.append(f"ds_read_b64_tr_b16 {vr(V_WF+20*buf+4*gi+2*hf,2)}, v{V_WRD+2*gi+hf} offset:{s4*SLOT}")
        return r
    for r in reads(0, 0, 0): a(r)
    a("s_waitcnt lgkmcnt(0)")
    a("s_barrier")
    dma(3)
    a(f"s_mov_b32 s{S_CNT}, 5")
    a(".p2align 6")
    a.label("K1_LOOP")
    for s4 in range(4):
        buf = s4 & 1
        a("s_waitcnt vmcnt(10) lgkmcnt(0)")
        a("s_barrier")
        nxt = reads((s4+1) & 3, buf ^ 1, 256 if s4 == 3 else 0)
        n = 0
        for gi in range(5):
            for rt in range(4):
                d = (n - 2) // 4 if n >= 2 and (n - 2) % 4 == 0 else None
                if d is not None and d < 5:
                    a(f"s_add_u32 m0, s{S_M0}, {s4*SLOT + d*1024}")
                a(f"v_mfma_f32_16x16x32_bf16 {vr(acc(gi,rt),4)}, {vr(V_WF+20*buf+4*gi,4)}, {vr(V_XF+16*buf+4*rt,4)}, {vr(acc(gi,rt),4)}")
                if d is not None and d < 5:
                    a(f"buffer_load_dwordx4 v{V_WOFF+d}, s[{S_WSRD}:{S_WSRD+3}], s{S_SOFF} offen lds")
                if n < 14:
                    a(nxt[n])
                n += 1
        a(f"s_add_u32 s{S_SOFF}, s{S_SOFF}, s{S_STEP}")
    for i in range(4):
        a(f"v_add_u32 v{V_X+i}, 256, v{V_X+i}")
    a(f"s_sub_u32 s{S_CNT}, s{S_CNT}, 1")
    a(f"s_cmp_lg_u32 s{S_CNT}, 0")
    a("s_cbranch_scc1 K1_LOOP")
    a("s_waitcnt vmcnt(0) lgkmcnt(0)")
    a("s_barrier")
    P.stamp()
    J = S_T0 + 8
    a(f"s_lshl_b32 s{J}, s2, 2")
    a(f"s_add_u32 s{J}, s{J}, s{S_W}")
    a(f"s_mul_i32 s{J+1}, s{J}, 6554")
    a(f"s_lshr_b32 s{J+1}, s{J+1}, 16")
    a(f"s_mul_i32 s{J+2}, s{J+1}, 10")
    a(f"s_sub_u32 s{J+2}, s{J}, s{J+2}")
    a(f"s_cmp_lt_u32 s{J+1}, 54")
    a(f"s_cselect_b32 s{S_JSRD}, s{P_W2}, s{P_WO}")
    a(f"s_cselect_b32 s{S_JSRD+1}, s{P_W2+1}, s{P_WO+1}")
    a(f"s_mov_b32 s{S_JSRD+2}, {1728*1280}")
    a(f"s_cselect_b32 s{S_JSRD+2}, s{S_JSRD+2}, {640*1280}")
    a(f"s_cselect_b32 s{J+3}, 0, 54")
    a(f"s_and_b32 s{S_JSRD+1}, s{S_JSRD+1}, 0xffff")
    a(f"s_mov_b32 s{S_JSRD+3}, 0x00020000")
    a(f"s_sub_u32 s{J+3}, s{J+1}, s{J+3}")
    a(f"s_mul_i32 s{J+3}, s{J+3}, {32*1280}")
    a(f"s_lshl_b32 s{S_STEP}, s{J+2}, 7")
    a(f"s_add_u32 s{S_SOFF}, s{J+3}, s{S_STEP}")
    a(f"v_lshrrev_b32 v{V_T}, 3, v{V_LANE}")
    a(f"v_bfe_u32 v{V_T+1}, v{V_T}, 1, 2")
    a(f"v_lshlrev_b32 v{V_T+1}, 1, v{V_T+1}")
    a(f"v_and_b32 v{V_T+2}, 7, v{V_LANE}")
    a(f"v_xor_b32 v{V_T+2}, v{V_T+2}, v{V_T+1}")
    a(f"v_mul_u32_u24 v{V_T}, 1280, v{V_T}")
    a(f"v_lshl_add_u32 v{V_T2+30}, v{V_T+2}, 4, v{V_T}")
    a(f"s_mul_i32 s{S_M0}, s{S_W}, 5120")
    a(f"s_add_u32 s{S_M0}, s{S_M0}, {X_BYTES + SLOT}")
    for jj in range(4):
        a(f"s_add_u32 m0, s{S_M0}, {jj*1024}")
        a(f"s_add_u32 s{S_STEP}, s{S_SOFF}, {jj*8*1280}")
        a(f"buffer_load_dwordx4 v{V_T2+30}, s[{S_JSRD}:{S_JSRD+3}], s{S_STEP} offen lds")
    a(f"s_mov_b32 s{S_CNT}, s{J+1}")
    a(f"s_mov_b32 s{S_STEP}, s{J+2}")
    a(f"s_cmp_lt_u32 s{S_SLOT}, 8")
    a("s_cbranch_scc1 K1_EPI_Q")
    a(f"s_cmp_lt_u32 s{S_SLOT}, 30")
    a("s_cbranch_scc1 K1_EPI_H")
    a(f"s_cmp_eq_u32 s{S_SLOT}, 30")
    a("s_cbranch_scc1 K1_EPI_K")
    a("s_branch K1_EPI_V")
    O = f"s[{S_OSRD}:{S_OSRD+3}]"
    def xreduce(v, t, op="v_add_f32"):
        a(f"v_mov_b32 v{t}, v{v}")
        a.nop(2)
        a(f"v_permlane16_swap_b32 v{t}, v{v}")
        a.nop(1)
        a(f"{op} v{v}, v{v}, v{t}")
        a(f"v_mov_b32 v{t}, v{v}")
        a.nop(2)
        a(f"v_permlane32_swap_b32 v{t}, v{v}")
        a.nop(1)
        a(f"{op} v{v}, v{v}, v{t}")
    a.label("K1_EPI_H")
    a(f"s_sub_u32 s{T}, s{S_SLOT}, 8")
    a(f"s_mul_i32 s{T}, s{T}, 5")
    a(f"s_lshl_b32 s{T+1}, s{S_RB}, 2")
    a(f"s_mul_i32 s{T+1}, s{T+1}, {AF_STEPS*1024}")
    a(f"s_add_u32 s{T+1}, s{T+1}, {AF_OFF}")
    a(f"s_lshr_b32 s{T+2}, s{T}, 1")
    a(f"s_lshl_b32 s{T+2}, s{T+2}, 10")
    a(f"s_add_u32 s{T+1}, s{T+1}, s{T+2}")
    a(f"v_lshlrev_b32 v{V_T}, 4, v{V_LANE}")
    def hpack(gi, rt, dst):
        c = acc(gi, rt)
        for j in range(4):
            a(f"v_mul_f32 v{c+j}, v{c+j}, v{V_RSTD+rt}")
        a(f"v_cvt_pk_bf16_f32 v{dst}, v{c}, v{c+1}")
        a(f"v_cvt_pk_bf16_f32 v{dst+1}, v{c+2}, v{c+3}")
        a(f"v_pk_max_i16 v{dst}, v{dst}, 0")
        a(f"v_pk_max_i16 v{dst+1}, v{dst+1}, 0")
    nst = {}
    a(f"s_and_b32 s{T+3}, s{T}, 1")
    a(f"s_cmp_eq_u32 s{T+3}, 1")
    a("s_cbranch_scc1 K1_EPI_H_ODD")
    for par in range(2):
        if par == 1: a.label("K1_EPI_H_ODD")
        cnt = 0
        units = [("pair", 0, 0), ("pair", 2, 1), ("single", 4, 2)] if par == 0 else [("single", 0, 0), ("pair", 1, 1), ("pair", 3, 2)]
        for ui, (kind, gi, stp) in enumerate(units):
            if par == 1 and ui == 2:
                a(f"s_cmp_eq_u32 s{S_SLOT}, 29")
                a("s_cbranch_scc1 K1_JOB_N8")
            for rt in range(4):
                q = V_T2 + 4*((ui*4+rt) & 3)
                a(f"s_add_u32 s{T+4}, s{T+1}, {stp*1024 + rt*AF_STEPS*1024}")
                if kind == "pair":
                    hpack(gi, rt, q); hpack(gi+1, rt, q+2)
                    a(f"buffer_store_dwordx4 {vr(q,4)}, v{V_T}, {O}, s{T+4} offen")
                else:
                    hpack(gi, rt, q)
                    a(f"buffer_store_dwordx2 {vr(q,2)}, v{V_T}, {O}, s{T+4} offen offset:{8*par}")
                cnt += 1
        a("s_waitcnt vmcnt(12)")
        a("s_branch K1_JOB")
    a.label("K1_JOB_N8")
    a("s_waitcnt vmcnt(8)")
    a("s_branch K1_JOB")
    a.label("K1_EPI_Q")
    a(f"s_lshl_b32 s{T}, s{S_RB}, 6")
    a(f"s_lshl_b32 s{T+1}, s{S_SLOT}, 2")
    a(f"s_add_u32 s{T}, s{T}, s{T+1}")
    a(f"s_mul_i32 s{T}, s{T}, 1280")
    if QF_OFF: a(f"s_add_u32 s{T}, s{T}, {QF_OFF}")
    a(f"s_add_u32 s{T+1}, s{T}, {32*1280}")
    for rt in range(4):
        a(f"v_mul_f32 v{V_RSTD+rt}, {f2h(QSCALE)}, v{V_RSTD+rt}")
    def piece_addr(q4reg, dst, dmul, hl_stride):
        t0, t1, t2 = V_T+1, V_T+2, V_T+3
        a(f"v_mul_u32_u24 v{t0}, 52, v{q4reg}")
        a(f"v_lshrrev_b32 v{t0}, 8, v{t0}")
        a(f"v_mul_u32_u24 v{t1}, 5, v{t0}")
        a(f"v_sub_u32 v{t1}, v{q4reg}, v{t1}")
        a(f"v_mul_u32_u24 v{t0}, {hl_stride}, v{t0}")
        a(f"v_lshrrev_b32 v{t2}, 1, v{t1}")
        a(f"v_lshlrev_b32 v{t2}, 9, v{t2}")
        a(f"v_add_u32 v{t0}, v{t0}, v{t2}")
        a(f"v_and_b32 v{t2}, 1, v{t1}")
        a(f"v_lshl_add_u32 v{t0}, v{t2}, 3, v{t0}")
        a(f"v_cmp_eq_u32 vcc, 4, v{t1}")
        a.nop(2)
        a(f"v_cndmask_b32 v{t2}, 4, 3, vcc")
        a.nop(1)
        a(f"v_lshlrev_b32 v{t1}, v{t2}, v{V_R}")
        a(f"v_add_u32 v{dst}, v{t0}, v{t1}")
        a(f"v_lshlrev_b32 v{dmul}, v{t2}, v{V_T+6}")
    a(f"v_mov_b32 v{V_T+6}, 16")
    for gi in range(5):
        a(f"v_add_u32 v{V_T+4}, {4*gi}, v{V_G}")
        piece_addr(V_T+4, V_T2+2*gi, V_T2+2*gi+1, 1280)
        a(f"v_add_u32 v{V_T2+2*gi+1}, v{V_T2+2*gi}, v{V_T2+2*gi+1}")
    for gi in range(5):
        for rt in range(4):
            c = acc(gi, rt)
            for j in range(4):
                a(f"v_mul_f32 v{c+j}, v{c+j}, v{V_RSTD+rt}")
            a(f"v_cvt_pk_bf16_f32 v{c}, v{c}, v{c+1}")
            a(f"v_cvt_pk_bf16_f32 v{c+1}, v{c+2}, v{c+3}")
            a(f"buffer_store_dwordx2 {vr(c,2)}, v{V_T2+2*gi+(rt&1)}, {O}, s{T+(rt>>1)} offen")
    a("s_waitcnt vmcnt(20)")
    a("s_branch K1_JOB")
    a.label("K1_EPI_K")
    a(f"s_mul_i32 s{T}, s{S_RB}, {2*KV_TILE}")
    a(f"s_add_u32 s{T}, s{T}, {KV_OFF}")
    a(f"s_add_u32 s{T+1}, s{T}, {KV_TILE}")
    a(f"v_mov_b32 v{V_T+6}, 16")
    for gi in range(2):
        a(f"v_add_u32 v{V_T+4}, {4*gi}, v{V_G}")
        piece_addr(V_T+4, V_T2+2*gi, V_T2+2*gi+1, 0)
        a(f"v_add_u32 v{V_T2+2*gi+1}, v{V_T2+2*gi}, v{V_T2+2*gi+1}")
    a(f"v_cmp_eq_u32 vcc, 0, v{V_G}")
    a(f"v_mov_b32 v{V_T+7}, {OOB}")
    a.nop(1)
    a(f"v_cndmask_b32 v{V_T2+2}, v{V_T+7}, v{V_T2+2}, vcc")
    a(f"v_cndmask_b32 v{V_T2+3}, v{V_T+7}, v{V_T2+3}, vcc")
    a(f"v_mov_b32 v{V_T2+8}, 0")
    for rt in range(4):
        nrm = V_T2+9
        for gi in range(2):
            c = acc(gi, rt)
            for j in range(4):
                a(f"v_mul_f32 v{c+j}, v{c+j}, v{V_RSTD+rt}")
        c0, c1 = acc(0, rt), acc(1, rt)
        a(f"v_mul_f32 v{nrm}, v{c0}, v{c0}")
        for j in range(1, 4): a(f"v_fmac_f32 v{nrm}, v{c0+j}, v{c0+j}")
        a(f"v_mul_f32 v{nrm+1}, v{c1}, v{c1}")
        for j in range(1, 4): a(f"v_fmac_f32 v{nrm+1}, v{c1+j}, v{c1+j}")
        a(f"v_cndmask_b32 v{nrm+1}, 0, v{nrm+1}, vcc")
        a(f"v_add_f32 v{nrm}, v{nrm}, v{nrm+1}")
        xreduce(nrm, nrm+1)
        a(f"v_max_f32 v{V_T2+8}, v{V_T2+8}, v{nrm}")
        for gi in range(2):
            c = acc(gi, rt)
            a(f"v_cvt_pk_bf16_f32 v{c}, v{c}, v{c+1}")
            a(f"v_cvt_pk_bf16_f32 v{c+1}, v{c+2}, v{c+3}")
            a(f"buffer_store_dwordx2 {vr(c,2)}, v{V_T2+2*gi+(rt&1)}, {O}, s{T+(rt>>1)} offen")
    a(f"v_lshlrev_b32 v{V_T+1}, 3, v{V_LANE}")
    a(f"v_add_u32 v{V_T+1}, {1024+256}, v{V_T+1}")
    a(f"v_cmp_gt_u32 vcc, 32, v{V_LANE}")
    a(f"v_mov_b32 v{V_T+2}, 0x3f803f80")
    a(f"v_mov_b32 v{V_T+3}, 0x00003f80")
    a(f"v_cndmask_b32 v{V_T+1}, v{V_T+7}, v{V_T+1}, vcc")
    for tt in range(2):
        a(f"buffer_store_dwordx2 {vr(V_T+2,2)}, v{V_T+1}, {O}, s{T+tt} offen")
    def rowmax(v):
        for sh in (8, 4, 2, 1):
            a.nop(2)
            a(f"v_max_f32_dpp v{v}, v{v}, v{v} row_ror:{sh} row_mask:0xf bank_mask:0xf")
    rowmax(V_T2+8)
    a(f"s_lshl_b32 s{T+2}, s{S_RB}, 2")
    a(f"s_add_u32 s{T+2}, s{T+2}, {ST_OFF}")
    a(f"v_cmp_eq_u32 vcc, 0, v{V_LANE}")
    a(f"v_mov_b32 v{V_T+4}, 0")
    a.nop(1)
    a(f"v_cndmask_b32 v{V_T+4}, v{V_T+7}, v{V_T+4}, vcc")
    a(f"buffer_store_dword v{V_T2+8}, v{V_T+4}, {O}, s{T+2} offen")
    a("s_waitcnt vmcnt(11)")
    a("s_branch K1_JOB")
    a.label("K1_EPI_V")
    a(f"s_mul_i32 s{T}, s{S_RB}, {2*KV_TILE}")
    a(f"s_add_u32 s{T}, s{T}, {KV_OFF + 1536}")
    a(f"v_lshrrev_b32 v{V_T+1}, 3, v{V_R}")
    a(f"v_lshlrev_b32 v{V_T+1}, 9, v{V_T+1}")
    a(f"v_and_b32 v{V_T+2}, 7, v{V_R}")
    a(f"v_lshl_add_u32 v{V_T+1}, v{V_T+2}, 1, v{V_T+1}")
    a(f"v_lshl_add_u32 v{V_T+1}, v{V_G}, 6, v{V_T+1}")
    a(f"v_mov_b32 v{V_T+7}, {OOB}")
    a(f"v_cmp_eq_u32 vcc, 0, v{V_G}")
    a(f"v_add_u32 v{V_T+2}, 256, v{V_T+1}")
    a.nop(1)
    a(f"v_cndmask_b32 v{V_T+2}, v{V_T+7}, v{V_T+2}, vcc")
    a(f"v_mov_b32 v{V_T2+8}, 0")
    for rt in range(4):
        a(f"s_add_u32 s{T+1}, s{T}, {(rt>>1)*KV_TILE + (rt&1)*1024}")
        for gi in range(2):
            c = acc(gi, rt)
            for j in range(4):
                a(f"v_mul_f32 v{c+j}, v{c+j}, v{V_RSTD+rt}")
            if gi == 0:
                a(f"v_max3_f32 v{V_T2+8}, |v{c}|, |v{c+1}|, v{V_T2+8}")
                a(f"v_max3_f32 v{V_T2+8}, |v{c+2}|, |v{c+3}|, v{V_T2+8}")
            else:
                a(f"v_max3_f32 v{V_T2+9}, |v{c}|, |v{c+1}|, |v{c+2}|")
                a(f"v_max_f32_e64 v{V_T2+9}, v{V_T2+9}, |v{c+3}|")
                a(f"v_cndmask_b32 v{V_T2+9}, 0, v{V_T2+9}, vcc")
                a(f"v_max_f32 v{V_T2+8}, v{V_T2+8}, v{V_T2+9}")
            a(f"v_cvt_pk_bf16_f32 v{c}, v{c}, v{c+1}")
            a(f"v_cvt_pk_bf16_f32 v{c+2}, v{c+2}, v{c+3}")
            ad = V_T+1+gi
            a(f"buffer_store_short v{c}, v{ad}, {O}, s{T+1} offen")
            a(f"buffer_store_short_d16_hi v{c}, v{ad}, {O}, s{T+1} offen offset:16")
            a(f"buffer_store_short v{c+2}, v{ad}, {O}, s{T+1} offen offset:32")
            a(f"buffer_store_short_d16_hi v{c+2}, v{ad}, {O}, s{T+1} offen offset:48")
    a(f"v_cmp_lt_u32 vcc, 11, v{V_LANE}")
    a.nop(2)
    a(f"v_cndmask_b32 v{V_T+3}, 0, 1, vcc")
    a(f"v_mul_u32_u24 v{V_T+4}, 12, v{V_T+3}")
    a(f"v_sub_u32 v{V_T+4}, v{V_LANE}, v{V_T+4}")
    a(f"v_cmp_eq_u32 vcc, 0, v{V_T+4}")
    a(f"v_add_u32 v{V_T+4}, 20, v{V_T+4}")
    a(f"v_lshl_add_u32 v{V_T+4}, v{V_T+3}, 5, v{V_T+4}")
    a(f"v_lshlrev_b32 v{V_T+4}, 4, v{V_T+4}")
    a(f"v_mov_b32 v{V_T+5}, 0x3f803f80")
    a(f"v_cndmask_b32 v{V_T2}, 0, v{V_T+5}, vcc")
    a(f"v_mov_b32 v{V_T2+1}, v{V_T2}")
    a(f"v_mov_b32 v{V_T2+2}, v{V_T2}")
    a(f"v_mov_b32 v{V_T2+3}, v{V_T2}")
    a(f"v_cmp_gt_u32 vcc, 24, v{V_LANE}")
    a.nop(2)
    a(f"v_cndmask_b32 v{V_T+4}, v{V_T+7}, v{V_T+4}, vcc")
    for tt in range(2):
        for t in range(2):
            a(f"s_add_u32 s{T+1}, s{T}, {tt*KV_TILE + t*1024}")
            a(f"buffer_store_dwordx4 {vr(V_T2,4)}, v{V_T+4}, {O}, s{T+1} offen")
    xreduce(V_T2+8, V_T2+9, "v_max_f32")
    rowmax(V_T2+8)
    a(f"s_lshl_b32 s{T+2}, s{S_RB}, 2")
    a(f"s_add_u32 s{T+2}, s{T+2}, {ST_OFF + 128}")
    a(f"v_cmp_eq_u32 vcc, 0, v{V_LANE}")
    a(f"v_mov_b32 v{V_T+1}, 0")
    a.nop(1)
    a(f"v_cndmask_b32 v{V_T+1}, v{V_T+7}, v{V_T+1}, vcc")
    a(f"buffer_store_dword v{V_T2+8}, v{V_T+1}, {O}, s{T+2} offen")
    a("s_waitcnt vmcnt(37)")
    a.label("K1_JOB")
    P.stamp()
    a(f"s_lshl_b32 s{J}, s2, 2")
    a(f"s_add_u32 s{J}, s{J}, s{S_W}")
    a(f"s_cmp_ge_u32 s{J}, 740")
    a("s_cbranch_scc1 K1_END_WAIT")
    a(f"v_lshrrev_b32 v{V_T}, 2, v{V_R}")
    a(f"v_lshl_add_u32 v{V_T}, v{V_G}, 2, v{V_T}")
    a(f"v_bfe_u32 v{V_T+1}, v{V_T}, 1, 2")
    a(f"v_lshlrev_b32 v{V_T+1}, 1, v{V_T+1}")
    a(f"v_lshlrev_b32 v{V_T}, 7, v{V_T}")
    a(f"v_and_b32 v{V_T+2}, 1, v{V_R}")
    a(f"v_lshl_add_u32 v{V_T}, v{V_T+2}, 3, v{V_T}")
    a(f"v_add_u32 v{V_T}, s{S_M0}, v{V_T}")
    a(f"v_bfe_u32 v{V_T+2}, v{V_R}, 1, 1")
    for ii in range(4):
        a(f"v_add_u32 v{V_T+3}, {2*ii}, v{V_T+2}")
        a(f"v_xor_b32 v{V_T+3}, v{V_T+3}, v{V_T+1}")
        a(f"v_lshl_add_u32 v{V_T+4}, v{V_T+3}, 4, v{V_T}")
        a(f"ds_read_b64_tr_b16 {vr(V_WF+4*ii,2)}, v{V_T+4}")
        a(f"ds_read_b64_tr_b16 {vr(V_WF+4*ii+2,2)}, v{V_T+4} offset:2048")
    a(f"v_lshlrev_b32 v{V_T}, 4, v{V_LANE}")
    for ii in range(4):
        a(f"s_lshl_b32 s{T}, s{S_STEP}, 2")
        a(f"s_add_u32 s{T}, s{T}, {ii}")
        a(f"s_mul_i32 s{T+1}, s{T}, 52")
        a(f"s_lshr_b32 s{T+1}, s{T+1}, 8")
        a(f"s_mul_i32 s{T+2}, s{T+1}, 5")
        a(f"s_sub_u32 s{T+2}, s{T}, s{T+2}")
        a(f"s_mul_i32 s{T+1}, s{T+1}, {AF_STEPS}")
        a(f"s_add_u32 s{T+1}, s{T+1}, s{S_CNT}")
        a(f"s_mul_i32 s{T+1}, s{T+1}, 5")
        a(f"s_add_u32 s{T+1}, s{T+1}, s{T+2}")
        a(f"s_lshl_b32 s{T+1}, s{T+1}, 10")
        a(f"s_add_u32 s{T+4+ii}, s{T+1}, {WF_OFF}")
    a("s_waitcnt lgkmcnt(0)")
    for ii in range(4):
        a(f"buffer_store_dwordx4 {vr(V_WF+4*ii,4)}, v{V_T}, {O}, s{T+4+ii} offen")
    a.label("K1_END_WAIT")
    P.stamp()
    a("s_waitcnt vmcnt(0)")
    P.stamp(); P.stamp(True)
    P.dump(P_WS, P_WS+1, S_W, V_T)
    a.label("K1_END")
    a("s_endpgm")
    return kernel_desc(NAME, NV)
```

```python
from asmlib import *
import struct
def f2h(x): return hex(struct.unpack('<I', struct.pack('<f', x))[0])

NAME = "k3_out_kernel"
NS = 4
STAGE = 36864
LDS = NS * STAGE
LOG2E = 1.4426950408889634
S_ASRD = 8; S_XSRD = 12; S_OSRD = 16
S_RB = 20; S_CB = 21; S_W = 22; S_I = 23; S_SW = 25; S_SA = 26; S_SLOT = 27; S_PSLOT = 28; S_R16 = 29; S_MW = 30; S_MA = 31
S_T = 32
S_KARG = 44
P_X, P_WQ, P_WK, P_WV, P_WO, P_BX, P_W1, P_W2, P_OUT, P_DBG, P_WS = [S_KARG + 2*i for i in range(11)]
V_LANE = 1; V_R = 2; V_G = 3
V_O16 = 9; V_ARD0 = 11; V_WRD = 12; V_ARD = 13; V_T = 14
V_X = 24
V_OADDR = 34
V_WF = 36
V_AF = 76
V_ACC = 84
V_Y = 104
NV = 128

def gen(a):
    kernel_header(a, NAME)
    a("s_cmp_ge_u32 s2, 256")
    a("s_cbranch_scc1 K3_END")
    P = Prof(a, 2)
    P.stamp(True); P.stamp()
    a(f"s_load_dwordx2 s[{P_X}:{P_X+1}], s[0:1], 0")
    a(f"s_load_dwordx2 s[{P_OUT}:{P_OUT+1}], s[0:1], 64")
    a(f"s_load_dwordx2 s[{P_WS}:{P_WS+1}], s[0:1], 80")
    a(f"v_and_b32 v{V_LANE}, 63, v0")
    a(f"v_lshrrev_b32 v{V_T}, 6, v0")
    a(f"v_and_b32 v{V_R}, 15, v0")
    a(f"v_readfirstlane_b32 s{S_W}, v{V_T}")
    a(f"v_bfe_u32 v{V_G}, v0, 4, 2")
    a(f"v_lshlrev_b32 v{V_O16}, 4, v{V_LANE}")
    T = S_T
    a(f"s_and_b32 s{T}, s2, 7")
    a(f"s_lshr_b32 s{T+1}, s2, 3")
    a(f"s_lshr_b32 s{T+2}, s{T}, 1")
    a(f"s_lshl_b32 s{T+2}, s{T+2}, 3")
    a(f"s_lshr_b32 s{T+3}, s{T+1}, 2")
    a(f"s_add_u32 s{S_RB}, s{T+2}, s{T+3}")
    a(f"s_and_b32 s{T+2}, s{T}, 1")
    a(f"s_lshl_b32 s{T+2}, s{T+2}, 2")
    a(f"s_and_b32 s{T+3}, s{T+1}, 3")
    a(f"s_add_u32 s{S_CB}, s{T+2}, s{T+3}")
    a(f"s_lshl_b32 s{S_R16}, s{S_RB}, 2")
    a(f"s_add_u32 s{S_R16}, s{S_R16}, s{S_W}")
    a(f"s_mul_i32 s{S_SW}, s{S_CB}, {AF_STEPS*5120}")
    a(f"s_mul_i32 s{S_MW}, s{S_W}, 5120")
    a(f"s_add_u32 s{S_SW}, s{S_SW}, s{S_MW}")
    a(f"s_add_u32 s{S_SW}, s{S_SW}, {WF_OFF}")
    a(f"s_mul_i32 s{S_SA}, s{S_R16}, {AF_STEPS*1024}")
    a(f"s_add_u32 s{S_SA}, s{S_SA}, {AF_OFF}")
    a(f"s_lshl_b32 s{S_MA}, s{S_W}, 12")
    a(f"s_add_u32 s{S_MA}, s{S_MA}, 20480")
    a(f"v_add_u32 v{V_ARD0}, s{S_MA}, v{V_O16}")
    a(f"s_mov_b32 s{S_PSLOT}, 0")
    a(f"s_lshl_b32 s{T+1}, s{S_R16}, 4")
    a(f"v_add_u32 v{V_T+1}, s{T+1}, v{V_R}")
    a(f"v_mul_u32_u24 v{V_T+1}, 1280, v{V_T+1}")
    a(f"v_lshl_add_u32 v{V_T+1}, v{V_G}, 3, v{V_T+1}")
    a(f"s_mul_i32 s{T+1}, s{S_CB}, 160")
    a(f"v_add_u32 v{V_OADDR}, s{T+1}, v{V_T+1}")
    a("s_waitcnt lgkmcnt(0)")
    srd(a, S_ASRD, P_WS, P_WS+1, WS_SIZE)
    AS_ = f"s[{S_ASRD}:{S_ASRD+3}]"
    def pf_ops():
        ops = []
        ops.append(([f"s_add_u32 m0, s{S_PSLOT}, s{S_MW}"], f"buffer_load_dwordx4 v{V_O16}, {AS_}, s{S_SW} offen lds"))
        for j in range(1, 4):
            ops.append(([], f"buffer_load_dwordx4 v{V_O16}, {AS_}, s{S_SW} offen offset:{1024*j} lds"))
        ops.append(([f"s_add_u32 s{T+4}, s{S_SW}, 4096", f"s_add_u32 s{T+5}, s{S_PSLOT}, s{S_MW}", f"s_add_u32 m0, s{T+5}, 4096"],
                    f"buffer_load_dwordx4 v{V_O16}, {AS_}, s{T+4} offen lds"))
        ops.append(([f"s_add_u32 m0, s{S_PSLOT}, s{S_MA}"], f"buffer_load_dwordx4 v{V_O16}, {AS_}, s{S_SA} offen lds"))
        for j in range(1, 4):
            ops.append(([], f"buffer_load_dwordx4 v{V_O16}, {AS_}, s{S_SA} offen offset:{1024*j} lds"))
        post = [f"s_add_u32 s{S_SW}, s{S_SW}, 20480", f"s_add_u32 s{S_SA}, s{S_SA}, 4096",
                f"s_add_u32 s{S_PSLOT}, s{S_PSLOT}, {STAGE}", f"s_cmp_eq_u32 s{S_PSLOT}, {NS*STAGE}",
                f"s_cselect_b32 s{S_PSLOT}, 0, s{S_PSLOT}"]
        return ops, post
    for st in range(NS-1):
        ops, post = pf_ops()
        for pre, op in ops:
            for p_ in pre: a(p_)
            if pre: a("s_nop 0")
            a(op)
        for p_ in post: a(p_)
    srd(a, S_XSRD, P_X, P_X+1, 2048*1280)
    srd(a, S_OSRD, P_OUT, P_OUT+1, 2048*1280)
    for gi in range(5):
        a(f"buffer_load_dwordx2 {vr(V_X+2*gi,2)}, v{V_OADDR}, s[{S_XSRD}:{S_XSRD+3}], 0 offen offset:{gi*32}")
    for i in range(20): a(f"v_mov_b32 v{V_ACC+i}, 0")
    for i in range(20): a(f"v_mov_b32 v{V_WF+20+i}, 0")
    for i in range(4): a(f"v_mov_b32 v{V_AF+4+i}, 0")
    a(f"s_mov_b32 s{S_I}, 0")
    a(f"s_mov_b32 s{S_SLOT}, 0")
    P.stamp()
    if PROFILE_ON():
        a(f"s_waitcnt vmcnt({9*(NS-2)})")
        P.stamp()
    def reads(sub, buf):
        r = [f"ds_read_b128 {vr(V_AF+4*buf,4)}, v{V_ARD} offset:{sub*1024}"]
        for gi in range(5):
            r.append(f"ds_read_b128 {vr(V_WF+20*buf+4*gi,4)}, v{V_WRD} offset:{sub*5120 + gi*1024}")
        return r
    def mfmas(buf):
        return [f"v_mfma_f32_16x16x32_bf16 {vr(V_ACC+4*gi,4)}, {vr(V_WF+20*buf+4*gi,4)}, {vr(V_AF+4*buf,4)}, {vr(V_ACC+4*gi,4)}" for gi in range(5)]
    a(".p2align 6")
    a.label("K3_LOOP")
    ops, post = pf_ops()
    where = {0: ops[0:3], 1: ops[3:5], 2: ops[5:7], 3: ops[7:9]}
    for blk in range(4):
        if blk == 0:
            a(f"s_waitcnt vmcnt({9*(NS-2)}) lgkmcnt(0)")
            a("s_barrier")
            a(f"v_add_u32 v{V_WRD}, s{S_SLOT}, v{V_O16}")
            a(f"v_add_u32 v{V_ARD}, s{S_SLOT}, v{V_ARD0}")
        else:
            a("s_waitcnt lgkmcnt(0)")
        if blk == 3:
            a(f"s_cmp_eq_u32 s{S_I}, 13")
            a("s_cbranch_scc1 K3_SWITCH")
            a.label("K3_SWITCH_BACK")
        rd = reads(blk, blk & 1); mm = mfmas((blk - 1) & 1)
        dm = list(where[blk])
        for gi in range(5):
            pend = dm.pop(0) if (dm and gi in (0, 2, 3)) else None
            if pend:
                for p_ in pend[0]: a(p_)
            a(mm[gi])
            if pend: a(pend[1])
            a(rd[gi])
            if gi == 4: a(rd[5])
        assert not dm
        if blk == 2:
            a(f"s_cmp_eq_u32 s{S_I}, 18")
            a("s_cbranch_scc1 K3_DONE")
    for p_ in post: a(p_)
    a(f"s_add_u32 s{S_SLOT}, s{S_SLOT}, {STAGE}")
    a(f"s_cmp_eq_u32 s{S_SLOT}, {NS*STAGE}")
    a(f"s_cselect_b32 s{S_SLOT}, 0, s{S_SLOT}")
    a(f"s_add_u32 s{S_I}, s{S_I}, 1")
    a("s_branch K3_LOOP")
    a.label("K3_SWITCH")
    a.nop(8)
    for i in range(20):
        a(f"v_mov_b32 v{V_Y+i}, v{V_ACC+i}")
        a(f"v_mov_b32 v{V_ACC+i}, 0")
    a.nop(2)
    a("s_branch K3_SWITCH_BACK")
    a.label("K3_DONE")
    P.stamp()
    a.nop(8)
    t = V_WF
    for gi in range(5):
        y = V_Y + 4*gi; tt = t + 8*gi
        for j in range(4):
            a(f"v_mul_f32 v{tt+j}, {f2h(-LOG2E)}, v{y+j}")
        for j in range(4):
            a(f"v_exp_f32 v{tt+j}, v{tt+j}")
        a.nop(1)
        for j in range(4):
            a(f"v_add_f32 v{tt+j}, 1.0, v{tt+j}")
        for j in range(4):
            a(f"v_rcp_f32 v{tt+j}, v{tt+j}")
        a.nop(1)
        for j in range(4):
            a(f"v_mul_f32 v{tt+j}, v{tt+j}, v{y+j}")
    a("s_waitcnt vmcnt(0) lgkmcnt(0)")
    for gi in range(5):
        s_ = V_ACC + 4*gi; x = V_X + 2*gi; tt = t + 8*gi
        a(f"v_lshlrev_b32 v{tt+4}, 16, v{x}")
        a(f"v_and_b32 v{tt+5}, 0xffff0000, v{x}")
        a(f"v_lshlrev_b32 v{tt+6}, 16, v{x+1}")
        a(f"v_and_b32 v{tt+7}, 0xffff0000, v{x+1}")
        for j in range(4):
            a(f"v_fmac_f32 v{tt+4+j}, v{tt+j}, v{s_+j}")
        a(f"v_cvt_pk_bf16_f32 v{x}, v{tt+4}, v{tt+5}")
        a(f"v_cvt_pk_bf16_f32 v{x+1}, v{tt+6}, v{tt+7}")
        a(f"buffer_store_dwordx2 {vr(x,2)}, v{V_OADDR}, s[{S_OSRD}:{S_OSRD+3}], 0 offen offset:{gi*32}")
    P.stamp()
    a("s_waitcnt vmcnt(0)")
    P.stamp(); P.stamp(True)
    P.dump(P_WS, P_WS+1, S_W, V_T)
    a.label("K3_END")
    a("s_endpgm")
    return kernel_desc(NAME, NV)
```
